```python
import torch

def _softmax(x, axis=-1):
    return torch.softmax(x, dim=axis)
def _gelu(x):
    return torch.nn.functional.gelu(x, approximate="tanh")
def _silu(x):
    return torch.nn.functional.silu(x)
def _sigmoid(x):
    return torch.sigmoid(x)
def _layernorm(x, axis=-1, eps=1e-5):
    m = x.mean(dim=axis, keepdim=True)
    v = x.var(dim=axis, keepdim=True, unbiased=False)
    return (x - m) / torch.sqrt(v + eps)
def _scatter_add(tgt, idx, src, axis=0):
    return tgt.clone().index_add_(axis, idx, src)
def _segment_sum(src, seg, n):
    out = torch.zeros((n,) + src.shape[1:], dtype=src.dtype)
    return out.index_add_(0, seg, src)
def _pad(x, pw):
    flat = tuple(v for pair in reversed(pw) for v in pair)
    return torch.nn.functional.pad(x, flat)

kernel_name = 'standalone__gqa_block_cached__near_ridge'

def setup_inputs():

    _w = (lambda a: (lambda t: t.to(torch.bfloat16) if t.is_floating_point() else t)(torch.as_tensor(a)))
    B, Sq, D = 8, 48, 1024
    Hq, Hkv, Sk, Dh = 32, 4, 2048, 128
    assert Hq % Hkv == 0, (Hq, Hkv)
    return {
        "x": _w((lambda *s: torch.randn(*s, dtype=torch.bfloat16) * 0.8)(B, Sq, D)),
        "k_cache": _w((lambda *s: torch.randn(*s, dtype=torch.bfloat16) * 0.8)(B, Hkv, Sk, Dh)),
        "v_cache": _w((lambda *s: torch.randn(*s, dtype=torch.bfloat16) * 0.05)(B, Hkv, Sk, Dh)),
        "wq": _w((lambda *s: torch.randn(*s, dtype=torch.bfloat16) * 0.8)(D, Hq * Dh) * (D ** -0.5)),
        "wo": _w((lambda *s: torch.randn(*s, dtype=torch.bfloat16) * 0.05)(Hq * Dh, D) * ((Hq * Dh) ** -0.5)),
    }

def reference(x, k_cache, v_cache, wq, wo):
    B, Sq, D = x.shape
    Hq, Dh = 32, 128
    Hkv = k_cache.shape[1]
    rep = Hq // Hkv
    q = (lambda x, *d: x.permute(*d))((x @ wq).reshape(B, Sq, Hq, Dh), 0, 2, 1, 3)
    k = (lambda x, n, axis: torch.repeat_interleave(x, n, dim=axis))(k_cache, rep, axis=1)
    v = (lambda x, n, axis: torch.repeat_interleave(x, n, dim=axis))(v_cache, rep, axis=1)
    scores = torch.einsum("bhqd,bhkd->bhqk", q, k) * (Dh ** -0.5)
    p = _softmax(scores, axis=-1)
    o = torch.einsum("bhqk,bhkd->bhqd", p, v)
    return (lambda x, *d: x.permute(*d))(o, 0, 2, 1, 3).reshape(B, Sq, Hq * Dh) @ wo
```

```python
import sys, os
STAMP=int(os.environ.get('STAMP','0'))
o=[]
def e(s): o.append("    "+s)
def lab(s): o.append(s+":")
class VM:
    def __init__(s): s.q=[]
    def issue(s,tag): s.q.append(tag)
    def wait(s,*tags):
        idx=max(i for i,t in enumerate(s.q) if t in tags)
        n=len(s.q)-1-idx
        assert n<=63
        e(f"s_waitcnt vmcnt({n})")
def r(a,n=4): return f"v[{a}:{a+n-1}]"
def mfma(d,a,b,c=None):
    c = r(d) if c is None else (c if isinstance(c,str) else r(c))
    e(f"v_mfma_f32_16x16x32_bf16 {r(d)}, {r(a)}, {r(b)}, {c}")
nst=[0]
def stamp():
    if STAMP:
        e(f"s_memrealtime s[{80+2*nst[0]}:{81+2*nst[0]}]"); nst[0]+=1
def stamp_out(k,ws,wv):
    if not STAMP: return
    e("s_waitcnt lgkmcnt(0)")
    e(f"s_cmp_lg_u32 {wv}, 0"); e(f"s_cbranch_scc1 L_end{k}")
    e(f"s_add_u32 s{ws}, s{ws}, {0x0F000000+k*0x10000}"); e(f"s_addc_u32 s{ws+1}, s{ws+1}, 0")
    e("s_lshl_b32 s4, s2, 6"); e("v_mov_b32 v1, s4")
    for i in range(nst[0]):
        e(f"v_mov_b32 v4, s{80+2*i}"); e(f"v_mov_b32 v5, s{81+2*i}")
        e(f"global_store_dwordx2 v1, v[4:5], s[{ws}:{ws+1}] offset:{8*i}"); e("s_nop 1")
    nst[0]=0
KB=1024
WOP=4*1024*1024
hdr=open('standalone__gqa_block_cached__near_ridge.s.ref').read().split('\n')
for l in hdr:
    if l.startswith('; @launch'):
        o.append("; @launch kernel=gqa_attn_kernel grid=(256,1,1) block=(512,1,1) lds=163840")
        o.append("; @launch kernel=gqa_oproj_kernel grid=(256,1,1) block=(512,1,1) lds=49152")
    elif l.startswith(';'): o.append(l)
    else: break
o.append('.amdgcn_target "amdgcn-amd-amdhsa--gfx950"\n.text')
o.append('.globl gqa_attn_kernel\n.p2align 8\n.type gqa_attn_kernel,@function\ngqa_attn_kernel:')
SX,SK,SV,SWQ,SWO,SWS=44,48,52,56,60,64
vA,vB,vX,vW0,vW1=2,3,4,5,6
VK=8; VV=12; ONES=20; T=24; Q=32; O=80; L=176; MN=188; KV=200; S=232
XQ=[136*KB,64*KB,88*KB,112*KB]
e("s_cmp_ge_u32 s2, 256"); e("s_cbranch_scc1 L_end0")
stamp()
e("s_load_dwordx8 s[4:11], s[0:1], 0"); e("s_load_dwordx2 s[12:13], s[0:1], 32"); e("s_load_dwordx2 s[14:15], s[0:1], 56")
e("v_lshrrev_b32 v1, 6, v0"); e("v_and_b32 v0, 63, v0"); e("v_readfirstlane_b32 s3, v1")
e("s_and_b32 s16, s2, 7"); e("s_lshr_b32 s17, s2, 3")
e("s_lshr_b32 s18, s16, 2"); e("s_lshl_b32 s18, s18, 2"); e("s_lshr_b32 s19, s17, 3"); e("s_add_u32 s18, s18, s19")
e("s_and_b32 s19, s16, 3")
e("s_lshl_b32 s20, s19, 3"); e("s_and_b32 s21, s17, 7"); e("s_add_u32 s20, s20, s21")
e("s_mul_i32 s22, s18, 98304")
e("s_lshl_b32 s23, s20, 8"); e("s_lshl_b32 s24, s3, 16"); e("s_add_u32 s23, s23, s24")
e("s_lshl_b32 s25, s18, 2"); e("s_add_u32 s25, s25, s19"); e("s_lshl_b32 s25, s25, 19"); e("s_add_u32 s25, s25, s24")
e("s_lshl_b32 s26, s3, 10")
e("s_lshl_b32 s27, s3, 11")
e("s_lshl_b32 s28, s3, 12")
e(f"v_lshrrev_b32 v{T}, 5, v0"); e("s_lshl_b32 s29, s3, 1"); e(f"v_add_u32 v{T}, s29, v{T}")
e(f"v_and_b32 v{T+1}, 7, v{T}"); e(f"v_lshlrev_b32 v{T+1}, 1, v{T+1}"); e(f"v_and_b32 v{T+2}, 31, v0"); e(f"v_xor_b32 v{T+1}, v{T+1}, v{T+2}")
e(f"v_lshlrev_b32 v{T+1}, 4, v{T+1}"); e(f"v_lshl_add_u32 v{vX}, v{T}, 11, v{T+1}")
e(f"v_lshrrev_b32 v{T}, 4, v0"); e(f"v_and_b32 v{T+2}, 15, v0")
e("s_and_b32 s29, s3, 1"); e("s_lshl_b32 s29, s29, 3")
e(f"v_lshl_or_b32 v{T+1}, v{T}, 1, s29"); e(f"v_xor_b32 v{T+1}, v{T+1}, v{T+2}"); e(f"v_lshlrev_b32 v{T+1}, 4, v{T+1}")
e(f"v_lshl_add_u32 v{vW0}, v{T}, 13, v{T+1}"); e(f"v_add_u32 v{vW1}, {32768-1024}, v{vW0}")
e("s_waitcnt lgkmcnt(0)")
for srd,b,sz in [(SX,4,786432),(SWQ,10,8388608),(SK,6,16777216),(SV,8,16777216),(SWO,12,8388608),(SWS,14,WOP+8388608)]:
    e(f"s_mov_b32 s{srd}, s{b}"); e(f"s_mov_b32 s{srd+1}, s{b+1}"); e(f"s_mov_b32 s{srd+2}, {sz}"); e(f"s_mov_b32 s{srd+3}, 0x00020000")
vm=VM()
def dma_x(q,t):
    e(f"s_add_u32 m0, s26, {XQ[q]+t*8192}"); e(f"s_add_u32 s30, s22, {t*32768+q*512}")
    e(f"buffer_load_dwordx4 v{vX}, s[{SX}:{SX+3}], s30 offen lds"); vm.issue(('x',q))
def dma_wq(s):
    e(f"s_add_u32 m0, s27, {(s&3)*16384}"); e(f"s_add_u32 s30, s23, {s*64*8192}")
    e(f"buffer_load_dwordx4 v{vW0}, s[{SWQ}:{SWQ+3}], s30 offen lds"); vm.issue(('w',s))
    e(f"buffer_load_dwordx4 v{vW1}, s[{SWQ}:{SWQ+3}], s30 offen offset:1024 lds"); vm.issue(('w',s))
def dma_kv(srd,half,tag,soff,add):
    base=(64*KB if srd==SK else 0)+half*32*KB
    e(f"s_add_u32 m0, s28, {base}"); e(f"s_add_u32 s30, {soff}, {add+half*4096}")
    for i in range(4):
        e(f"buffer_load_dwordx4 v{vB if i&1 else vA}, s[{srd}:{srd+3}], s30 offen offset:{1024*i} lds"); vm.issue(tag)
for t in range(3): dma_x(0,t)
for s in range(3): dma_wq(s)
for t in range(3): dma_x(1,t)
e(f"v_lshlrev_b32 v{T+1}, 1, v{T}"); e(f"v_xor_b32 v{T+1}, v{T+1}, v{T+2}"); e(f"v_lshlrev_b32 v{T+1}, 4, v{T+1}")
e(f"v_lshl_add_u32 v{vA}, v{T}, 8, v{T+1}"); e(f"v_xor_b32 v{vB}, 128, v{vA}")
e(f"v_and_b32 v{T+3}, 7, v0"); e(f"v_lshlrev_b32 v{T+3}, 1, v{T+3}"); e(f"v_xor_b32 v{T+3}, v{T+3}, v{T}"); e(f"v_lshlrev_b32 v{T+3}, 4, v{T+3}")
XA=VV
e(f"v_lshl_add_u32 v{T+4}, v{T+2}, 9, v{T+3}"); e(f"v_add_u32 v{T+4}, {XQ[0]}, v{T+4}")
e(f"v_lshl_add_u32 v{T+5}, v{T+2}, 8, v{T+3}")
e("s_add_u32 s29, s28, 65536"); e(f"v_add_u32 v{T+5}, s29, v{T+5}")
for j in range(4):
    e(f"v_xor_b32 v{XA+j}, {64*j}, v{T+4}"); e(f"v_xor_b32 v{VK+j}, {64*j}, v{T+5}")
    e(f"v_mov_b32 v{ONES+j}, 0x3f803f80")
e(f"v_bfe_u32 v{T+4}, v0, 2, 2"); e(f"v_and_b32 v{T+5}, 1, v{T}"); e(f"v_lshl_or_b32 v{T+5}, v{T+5}, 2, v{T+4}"); e(f"v_xor_b32 v{T+5}, s3, v{T+5}")
e(f"v_lshl_add_u32 v{T+6}, v{T}, 3, v{T+4}"); e(f"v_lshlrev_b32 v{T+6}, 8, v{T+6}"); e(f"v_lshl_add_u32 v{T+6}, v{T+5}, 5, v{T+6}")
e(f"v_and_b32 v{T+7}, 3, v0"); e(f"v_lshl_add_u32 v{XA+4}, v{T+7}, 3, v{T+6}")
xs={1:(2,0),3:(2,1),5:(2,2),6:(3,0),8:(3,1),9:(3,2)}
FA=KV; FB=KV+8; ACC=L
for s in range(16):
    vm.wait(('w',s),('x',s>>2))
    e("s_barrier")
    if s in xs: dma_x(*xs[s])
    if s+3<16: dma_wq(s+3)
    if s==12: dma_kv(SK,0,'K0','s25',0)
    if s==14: dma_kv(SV,0,'V0','s25',0)
    if s and s%4==0:
        for j in range(4): e(f"v_add_u32 v{XA+j}, {(XQ[s>>2]-XQ[(s>>2)-1])&0xffffffff}, v{XA+j}")
    for ee in range(2):
        ks=(s&3)*2+ee
        for hf in range(2): e(f"ds_read_b64_tr_b16 {r(FA+4*ee+2*hf,2)}, v{XA+4} offset:{(s&3)*16384+ee*8192+hf*1024}")
        for qt in range(3): e(f"ds_read_b128 {r(FB+12*ee+4*qt)}, v{XA+(ks&3)} offset:{qt*8192+(ks>>2)*256}")
    for ee in range(2):
        e(f"s_waitcnt lgkmcnt({5-5*ee})")
        for qt in range(3): mfma(ACC+4*qt,FA+4*ee,FB+12*ee+4*qt,"0" if (s==0 and ee==0) else None)
stamp()
e(f"v_lshrrev_b32 v{T}, 4, v0"); e(f"v_and_b32 v{T+2}, 15, v0")
e(f"v_lshrrev_b32 v{T+1}, 1, v{T}"); e("s_lshl_b32 s29, s3, 1"); e(f"v_add_u32 v{T+1}, s29, v{T+1}")
e(f"v_and_b32 v{T+3}, 7, v0"); e(f"v_lshlrev_b32 v{T+3}, 1, v{T+3}"); e(f"v_xor_b32 v{T+1}, v{T+1}, v{T+3}"); e(f"v_lshlrev_b32 v{T+1}, 4, v{T+1}")
e(f"v_lshl_add_u32 v{T+1}, v{T+2}, 8, v{T+1}"); e(f"v_and_b32 v{T+3}, 1, v{T}"); e(f"v_lshl_add_u32 v{T+1}, v{T+3}, 3, v{T+1}"); e(f"v_add_u32 v{T+1}, {136*KB}, v{T+1}")
import struct, math
sc=struct.unpack('<I',struct.pack('<f',math.log2(math.e)/math.sqrt(128)))[0]
e(f"s_mov_b32 s29, {sc}")
for i in range(12): e(f"v_mul_f32 v{ACC+i}, s29, v{ACC+i}")
for qt in range(3):
    e(f"v_cvt_pk_bf16_f32 v{ACC+4*qt}, v{ACC+4*qt}, v{ACC+4*qt+1}"); e(f"v_cvt_pk_bf16_f32 v{ACC+4*qt+1}, v{ACC+4*qt+2}, v{ACC+4*qt+3}")
    e(f"ds_write_b64 v{T+1}, {r(ACC+4*qt,2)} offset:{qt*4096}")
e(f"v_lshrrev_b32 v{T+4}, 2, v0")
e(f"v_and_b32 v{T+5}, 7, v{T+4}"); e(f"v_lshlrev_b32 v{T+5}, 5, v{T+5}"); e(f"v_lshl_add_u32 v{T+5}, v{T+4}, 8, v{T+5}")
e(f"v_and_b32 v{T+6}, 3, v0"); e(f"v_lshl_add_u32 v{T+5}, v{T+6}, 3, v{T+5}"); e(f"v_add_u32 v{T+5}, s28, v{T+5}")
for dt in range(8): e(f"v_xor_b32 v{VV+dt}, {32*dt}, v{T+5}")
e(f"s_sub_u32 s29, {72*KB}, s28")
for j in range(4): e(f"v_add_u32 v{T+4+j}, s29, v{VK+j}")
e("s_waitcnt lgkmcnt(0)"); e("s_barrier")
dma_kv(SK,1,'K0','s25',0); dma_kv(SV,1,'V0','s25',0)
for s in range(4):
    for qt in range(3): e(f"ds_read_b128 {r(Q+12*s+4*qt)}, v{T+4+s} offset:{qt*4096}")
e("s_add_u32 s31, s25, 8192")
def xmax(qt,dst,tmp):
    b=S+8*qt
    e(f"v_max3_f32 v{dst}, v{b}, v{b+1}, v{b+2}"); e(f"v_max3_f32 v{tmp}, v{b+3}, v{b+4}, v{b+5}")
    e(f"v_max3_f32 v{dst}, v{dst}, v{b+6}, v{b+7}"); e(f"v_max_f32 v{dst}, v{dst}, v{tmp}")
    for op in ("v_permlane32_swap_b32","v_permlane16_swap_b32"):
        e(f"v_mov_b32 v{tmp}, v{dst}"); e("s_nop 1"); e(f"{op} v{dst}, v{tmp}"); e("s_nop 1"); e(f"v_max_f32 v{dst}, v{dst}, v{tmp}")
rare=[]
def block(kind):
    vm.wait('K0')
    for s in range(4):
        for t in range(2): e(f"ds_read_b128 {r(KV+16*t+4*s)}, v{VK+s} offset:{t*32768}")
    e("s_waitcnt lgkmcnt(0)")
    vm.q=[('k' if x=='K0' else x) for x in vm.q]
    if kind<2:
        dma_kv(SK,0,'K0','s31',0); dma_kv(SK,1,'K0','s31',0)
    else:
        e(f"v_lshrrev_b32 v{T}, 3, v0"); e(f"v_lshlrev_b32 v{T}, 11, v{T}"); e(f"v_and_b32 v{T+1}, 7, v0"); e(f"v_lshl_add_u32 v{vA}, v{T+1}, 4, v{T}")
        e("s_lshr_b32 s32, s2, 1"); e("s_and_b32 s33, s2, 1"); e("s_lshl_b32 s33, s33, 3"); e("s_add_u32 s33, s33, s3")
        e("s_lshl_b32 s34, s32, 16"); e("s_lshl_b32 s35, s33, 7"); e("s_add_u32 s34, s34, s35")
        for i in range(4):
            e(f"s_add_u32 m0, s28, {96*KB+i*1024}"); e(f"s_add_u32 s30, s34, {i*16384}")
            e(f"buffer_load_dwordx4 v{vA}, s[{SWO}:{SWO+3}], s30 offen lds"); vm.issue('WO')
    for s in range(4):
        for t in range(2):
            for qt in range(3):
                mfma(S+8*qt+4*t,KV+16*t+4*s,Q+12*s+4*qt,(("0" if kind==0 else MN+4*qt) if s==0 else None))
    e("s_nop 7")
    if kind==0:
        for qt in range(3):
            xmax(qt,T,T+1)
            for i in range(4): e(f"v_sub_f32 v{MN+4*qt+i}, 0, v{T}")
            for i in range(8): e(f"v_sub_f32 v{S+8*qt+i}, v{S+8*qt+i}, v{T}")
    else:
        for i in range(4): e(f"v_max3_f32 v{T+i}, v{S+6*i}, v{S+6*i+1}, v{S+6*i+2}")
        for i in range(4): e(f"v_max3_f32 v{T+i}, v{T+i}, v{S+6*i+3}, v{S+6*i+4}")
        e(f"v_max3_f32 v{T}, v{T}, v{S+5}, v{S+11}"); e(f"v_max3_f32 v{T+1}, v{T+1}, v{S+17}, v{S+23}")
        e(f"v_max3_f32 v{T}, v{T}, v{T+2}, v{T+3}"); e(f"v_max_f32 v{T}, v{T}, v{T+1}")
        e(f"v_cmp_lt_f32 vcc, 0x41000000, v{T}")
        e(f"s_cbranch_vccnz L_rare{kind}"); lab(f"L_back{kind}")
        rare.append(kind)
    if kind==2:
        e(f"v_and_b32 v{T}, 15, v0"); e(f"v_lshlrev_b32 v{T}, 5, v{T}"); e("s_lshl_b32 s29, s3, 2"); e(f"s_add_u32 s29, s29, {128*KB}"); e(f"v_add_u32 v{T+2}, s29, v{T}")
        for qt in range(3): e(f"ds_write_b32 v{T+2}, v{MN+4*qt} offset:{qt*512}")
    for i in range(24): e(f"v_exp_f32 v{S+i}, v{S+i}")
    vm.wait('V0')
    for dt in range(8):
        for t in range(2): e(f"ds_read_b64_tr_b16 {r(KV+4*dt+2*t,2)}, v{VV+dt} offset:{t*32768}")
    for qt in range(3):
        for i in range(4): e(f"v_cvt_pk_bf16_f32 v{S+8*qt+i}, v{S+8*qt+2*i}, v{S+8*qt+2*i+1}")
    e("s_nop 0")
    for qt in range(3): mfma(L+4*qt,ONES,S+8*qt,"0" if kind==0 else None)
    e("s_waitcnt lgkmcnt(0)")
    vm.q=[('v' if x=='V0' else x) for x in vm.q]
    if kind<2:
        dma_kv(SV,0,'V0','s31',0); dma_kv(SV,1,'V0','s31',0)
        e("s_add_u32 s31, s31, 8192")
    for dt in range(8):
        for qt in range(3): mfma(O+12*dt+4*qt,KV+4*dt,S+8*qt,"0" if kind==0 else None)
block(0)
stamp()
e("s_mov_b32 s36, 6")
lab("L_loop")
block(1)
e("s_sub_u32 s36, s36, 1"); e("s_cmp_lg_u32 s36, 0"); e("s_cbranch_scc1 L_loop")
block(2)
stamp()
e(f"v_lshrrev_b32 v{T+4}, 2, v0"); e(f"v_lshlrev_b32 v{T+4}, 7, v{T+4}"); e(f"v_and_b32 v{T+5}, 3, v0"); e(f"v_lshl_add_u32 v{T+4}, v{T+5}, 3, v{T+4}")
e(f"s_add_u32 s29, s28, {96*KB}"); e(f"v_add_u32 v{T+4}, s29, v{T+4}")
e(f"v_lshlrev_b32 v{T+5}, 4, v0")
e(f"s_lshl_b32 s34, s33, 19"); e("s_lshl_b32 s35, s32, 11"); e("s_add_u32 s34, s34, s35"); e(f"s_add_u32 s34, s34, {WOP}"); e("s_add_u32 s35, s34, 262144")
e("s_waitcnt vmcnt(0)")
for n4 in range(4):
    for hf in range(2): e(f"ds_read_b64_tr_b16 {r(Q+4*n4+2*hf,2)}, v{T+4} offset:{hf*2048+n4*32}")
e("s_waitcnt lgkmcnt(0)")
e("s_barrier")
for n4 in range(4): e(f"buffer_store_dwordx4 {r(Q+4*n4)}, v{T+5}, s[{SWS}:{SWS+3}], s{34+(n4>>1)} offen offset:{(n4&1)*1024}")
e(f"v_add_u32 v{T+3}, {128*KB}, v{T}")
for qt in range(3):
    for h in range(2): e(f"ds_read_b128 {r(KV+8*qt+4*h)}, v{T+3} offset:{qt*512+16*h}")
e(f"v_lshlrev_b32 v{T+4}, 3, v0"); e("s_lshl_b32 s29, s3, 9"); e(f"v_add_u32 v{T+5}, s29, v{T+4}")
e(f"v_add_u32 v{T+6}, 49152, v{T+5}")
e("s_mul_i32 s29, s3, 12288"); e(f"v_add_u32 v{T+7}, s29, v{T+4}")
e("s_waitcnt lgkmcnt(0)")
for qt in range(3):
    b=KV+8*qt
    e(f"v_min3_f32 v{b}, v{b}, v{b+1}, v{b+2}"); e(f"v_min3_f32 v{b+3}, v{b+3}, v{b+4}, v{b+5}"); e(f"v_min3_f32 v{b}, v{b}, v{b+6}, v{b+7}"); e(f"v_min_f32 v{b}, v{b}, v{b+3}")
    e(f"v_sub_f32 v{b}, v{b}, v{MN+4*qt}"); e(f"v_exp_f32 v{b}, v{b}"); e("s_nop 0"); e(f"v_mov_b32 v{b+1}, v{b}")
    e(f"v_mul_f32 v{L+4*qt}, v{L+4*qt}, v{b}")
    e(f"ds_write_b32 v{T+2}, v{L+4*qt} offset:{2048+qt*512}")
for dt in range(8):
    for qt in range(3):
        a=O+12*dt+4*qt; b=KV+8*qt
        e(f"v_pk_mul_f32 {r(a,2)}, {r(a,2)}, {r(b,2)}"); e(f"v_pk_mul_f32 {r(a+2,2)}, {r(a+2,2)}, {r(b,2)}")
        e(f"v_cvt_pk_bf16_f32 v{a}, v{a}, v{a+1}"); e(f"v_cvt_pk_bf16_f32 v{a+1}, v{a+2}, v{a+3}")
        off=(dt*3+qt)*4096
        e(f"ds_write_b64 v{T+5 if off<49152 else T+6}, {r(a,2)} offset:{off%49152}")
e(f"v_and_b32 v{T}, 1, v0"); e(f"v_lshlrev_b32 v{T}, 4, v{T}"); e(f"v_mov_b32 v{T+1}, 0x3f80"); e(f"v_lshlrev_b32 v{T}, v{T}, v{T+1}")
e(f"v_lshrrev_b32 v{T+1}, 4, v0"); e(f"v_lshlrev_b32 v{T+1}, 1, v{T+1}"); e(f"v_bfe_u32 v{T+4}, v0, 1, 3")
e(f"v_cmp_eq_u32 vcc, v{T+1}, v{T+4}"); e(f"v_add_u32 v{T+1}, 1, v{T+1}"); e("s_nop 0"); e(f"v_cndmask_b32 v{ONES}, 0, v{T}, vcc"); e(f"v_cndmask_b32 v{ONES+2}, 0, v{T}, vcc")
e(f"v_cmp_eq_u32 vcc, v{T+1}, v{T+4}"); e("s_nop 1"); e(f"v_cndmask_b32 v{ONES+1}, 0, v{T}, vcc"); e(f"v_cndmask_b32 v{ONES+3}, 0, v{T}, vcc")
e("s_lshl_b32 s29, s18, 5"); e("s_add_u32 s29, s29, s20"); e("s_lshl_b32 s29, s29, 2"); e("s_lshr_b32 s30, s3, 1"); e("s_add_u32 s29, s29, s30"); e("s_mul_i32 s29, s29, 3072")
e("s_and_b32 s30, s3, 1"); e("s_lshl_b32 s30, s30, 3"); e("s_add_u32 s29, s29, s30"); e(f"v_lshlrev_b32 v{T+5}, 4, v0")
e("s_waitcnt lgkmcnt(0)"); e("s_barrier")
for qt in range(3):
    for h in range(2): e(f"ds_read_b128 {r(KV+8*qt+4*h)}, v{T+3} offset:{2048+qt*512+16*h}")
for qt in range(3):
    for u in range(4): e(f"ds_read2st64_b64 {r(O+16*qt+4*u)}, v{T+7} offset0:{qt*8+2*u} offset1:{qt*8+2*u+1}")
e("s_waitcnt lgkmcnt(12)")
for qt in range(3):
    b=KV+8*qt
    e(f"v_pk_add_f32 {r(b,2)}, {r(b,2)}, {r(b+2,2)}"); e(f"v_pk_add_f32 {r(b+4,2)}, {r(b+4,2)}, {r(b+6,2)}"); e(f"v_pk_add_f32 {r(b,2)}, {r(b,2)}, {r(b+4,2)}")
    e(f"v_add_f32 v{b}, v{b}, v{b+1}"); e(f"v_rcp_f32 v{b}, v{b}")
e("s_waitcnt lgkmcnt(0)")
for u in range(4):
    for qt in range(3): mfma(S+4*qt,ONES,O+16*qt+4*u,"0" if u==0 else None)
e("s_nop 7")
for qt in range(3):
    a=S+4*qt
    for i in range(4): e(f"v_mul_f32 v{a+i}, v{a+i}, v{KV+8*qt}")
    e(f"v_cvt_pk_bf16_f32 v{a}, v{a}, v{a+1}"); e(f"v_cvt_pk_bf16_f32 v{a+1}, v{a+2}, v{a+3}")
    e(f"buffer_store_dwordx2 {r(a,2)}, v{T+5}, s[{SWS}:{SWS+3}], s29 offen offset:{qt*1024}")
stamp()
stamp_out(0,14,'s3')
lab("L_end0"); e("s_endpgm")
for kind in rare:
    lab(f"L_rare{kind}")
    for qt in range(3):
        xmax(qt,T,T+1)
        e(f"v_max_f32 v{T}, 0, v{T}"); e(f"v_sub_f32 v{T+1}, 0, v{T}"); e(f"v_exp_f32 v{T+1}, v{T+1}")
        for i in range(4): e(f"v_sub_f32 v{MN+4*qt+i}, v{MN+4*qt+i}, v{T}")
        for i in range(8): e(f"v_sub_f32 v{S+8*qt+i}, v{S+8*qt+i}, v{T}")
        for i in range(4): e(f"v_mul_f32 v{L+4*qt+i}, v{L+4*qt+i}, v{T+1}")
        for dt in range(8):
            for i in range(4): e(f"v_mul_f32 v{O+12*dt+4*qt+i}, v{O+12*dt+4*qt+i}, v{T+1}")
    e(f"s_branch L_back{kind}")
o.append('.globl gqa_oproj_kernel\n.p2align 8\n.type gqa_oproj_kernel,@function\ngqa_oproj_kernel:')
e("s_cmp_ge_u32 s2, 256"); e("s_cbranch_scc1 L_end1")
stamp()
e("s_load_dwordx2 s[12:13], s[0:1], 40"); e("s_load_dwordx2 s[14:15], s[0:1], 56")
e("v_lshrrev_b32 v1, 6, v0"); e("v_and_b32 v0, 63, v0"); e("v_readfirstlane_b32 s3, v1"); e("v_lshlrev_b32 v2, 4, v0")
e("s_and_b32 s16, s2, 7"); e("s_lshr_b32 s17, s2, 3")
e("s_and_b32 s18, s16, 1"); e("s_lshl_b32 s18, s18, 2"); e("s_and_b32 s19, s17, 3"); e("s_add_u32 s18, s18, s19")
e("s_lshr_b32 s19, s16, 1"); e("s_lshl_b32 s19, s19, 3"); e("s_lshr_b32 s20, s17, 2"); e("s_add_u32 s19, s19, s20")
e("s_mul_i32 s22, s18, 393216"); e("s_mul_i32 s23, s3, 49152"); e("s_add_u32 s22, s22, s23")
e("s_lshl_b32 s23, s19, 18"); e("s_lshl_b32 s24, s3, 15"); e("s_add_u32 s23, s23, s24"); e(f"s_add_u32 s23, s23, {WOP}")
e("s_waitcnt lgkmcnt(0)")
for srd,b,sz in [(44,14,WOP+8388608),(48,12,786432)]:
    e(f"s_mov_b32 s{srd}, s{b}"); e(f"s_mov_b32 s{srd+1}, s{b+1}"); e(f"s_mov_b32 s{srd+2}, {sz}"); e(f"s_mov_b32 s{srd+3}, 0x00020000")
NB=11; BUF=32; AC=8
vm=VM()
def ld(k):
    b=BUF+20*(k%NB)
    e(f"s_add_u32 s25, s23, {k*2048}"); e(f"s_add_u32 s26, s22, {k*3072}")
    for n in range(2): e(f"buffer_load_dwordx4 {r(b+4*n)}, v2, s[44:47], s25 offen offset:{n*1024}"); vm.issue(k)
    for qt in range(3): e(f"buffer_load_dwordx4 {r(b+8+4*qt)}, v2, s[44:47], s26 offen offset:{qt*1024}"); vm.issue(k)
for k in range(NB): ld(k)
e("s_lshl_b32 s27, s3, 10"); e("v_add_u32 v3, s27, v2")
e("s_lshl_b32 s27, s3, 13"); e("v_add_u32 v4, s27, v2")
e("s_cmp_ge_u32 s3, 3"); e("s_cselect_b32 s28, 1, 0"); e("s_mul_i32 s29, s28, 3"); e("s_sub_u32 s29, s3, s29")
e("s_mul_i32 s30, s18, 98304"); e("s_lshl_b32 s29, s29, 15"); e("s_add_u32 s30, s30, s29"); e("s_lshl_b32 s29, s19, 6"); e("s_add_u32 s30, s30, s29")
e("s_lshl_b32 s29, s28, 5"); e("s_add_u32 s30, s30, s29")
e("v_and_b32 v5, 15, v0"); e("v_lshlrev_b32 v5, 11, v5"); e("v_lshrrev_b32 v6, 4, v0"); e("v_lshl_add_u32 v5, v6, 3, v5")
for k in range(16):
    vm.wait(k)
    b=BUF+20*(k%NB)
    for n in range(2):
        for qt in range(3): mfma(AC+12*n+4*qt,b+4*n,b+8+4*qt,"0" if k==0 else None)
    if k+NB<16: ld(k+NB)
stamp()
e("s_nop 7")
for t in range(6): e(f"ds_write_b128 v3, {r(AC+4*t)} offset:{t*8192}")
e("s_waitcnt lgkmcnt(0)"); e("s_barrier")
e("s_cmp_ge_u32 s3, 6"); e("s_cbranch_scc1 L_end1")
for u in range(8): e(f"ds_read_b128 {r(BUF+4*u)}, v4 offset:{u*1024}")
for st in (4,2,1):
    if st==4: e("s_waitcnt lgkmcnt(0)")
    for u in range(st):
        for h in range(2): e(f"v_pk_add_f32 {r(BUF+4*u+2*h,2)}, {r(BUF+4*u+2*h,2)}, {r(BUF+4*(u+st)+2*h,2)}")
e(f"v_cvt_pk_bf16_f32 v{BUF}, v{BUF}, v{BUF+1}"); e(f"v_cvt_pk_bf16_f32 v{BUF+1}, v{BUF+2}, v{BUF+3}")
e(f"buffer_store_dwordx2 {r(BUF,2)}, v5, s[48:51], s30 offen")
stamp()
stamp_out(1,14,'s3')
lab("L_end1"); e("s_endpgm")
o.append('.section .rodata,"a"')
for k in ("gqa_attn_kernel","gqa_oproj_kernel"):
    o.append(f'''.p2align 6
.amdhsa_kernel {k}
  .amdhsa_next_free_vgpr 256
  .amdhsa_next_free_sgpr 102
  .amdhsa_accum_offset 256
  .amdhsa_group_segment_fixed_size 0
  .amdhsa_kernarg_size 64
  .amdhsa_user_sgpr_count 2
  .amdhsa_user_sgpr_kernarg_segment_ptr 1
  .amdhsa_system_sgpr_workgroup_id_x 1
.end_amdhsa_kernel''')
print("\n".join(o))
```

```python
import sys, os
STAMP=int(os.environ.get('STAMP','0'))
SW=int(os.environ.get('SW','0'))
o=[]
EXP=int(os.environ.get('EXP','0'))
def e(s):
    o.append("    "+s)
def lab(s): o.append(s+":")
class VM:
    def __init__(s): s.q=[]
    def issue(s,tag): s.q.append(tag)
    def wait(s,*tags):
        idx=max(i for i,t in enumerate(s.q) if t in tags)
        n=len(s.q)-1-idx
        assert n<=63
        e(f"s_waitcnt vmcnt({n})")
def r(a,n=4): return f"v[{a}:{a+n-1}]"
def mfma(d,a,b,c=None):
    c = r(d) if c is None else (c if isinstance(c,str) else r(c))
    e(f"v_mfma_f32_16x16x32_bf16 {r(d)}, {r(a)}, {r(b)}, {c}")
nst=[0]
def stamp():
    if STAMP:
        e(f"s_memrealtime s[{80+2*nst[0]}:{81+2*nst[0]}]"); nst[0]+=1
def stamp_out(k,ws,wv):
    if not STAMP: return
    e("s_waitcnt lgkmcnt(0)")
    e(f"s_cmp_lg_u32 {wv}, {SW if k==0 else min(SW,5)}"); e(f"s_cbranch_scc1 L_end{k}")
    e(f"s_add_u32 s{ws}, s{ws}, {0x0F000000+k*0x10000}"); e(f"s_addc_u32 s{ws+1}, s{ws+1}, 0")
    e("s_lshl_b32 s4, s2, 6"); e("v_mov_b32 v1, s4")
    for i in range(nst[0]):
        e(f"v_mov_b32 v4, s{80+2*i}"); e(f"v_mov_b32 v5, s{81+2*i}")
        e(f"global_store_dwordx2 v1, v[4:5], s[{ws}:{ws+1}] offset:{8*i}"); e("s_nop 1")
    nst[0]=0
KB=1024
WOP=4*1024*1024
hdr=open('standalone__gqa_block_cached__near_ridge.s.ref').read().split('\n')
for l in hdr:
    if l.startswith('; @launch'):
        o.append("; @launch kernel=gqa_attn_kernel grid=(256,1,1) block=(512,1,1) lds=163840")
        o.append("; @launch kernel=gqa_oproj_kernel grid=(256,1,1) block=(512,1,1) lds=49152")
    elif l.startswith(';'): o.append(l)
    else: break
o.append('.amdgcn_target "amdgcn-amd-amdhsa--gfx950"\n.text')
o.append('.globl gqa_attn_kernel\n.p2align 8\n.type gqa_attn_kernel,@function\ngqa_attn_kernel:')
SX,SK,SV,SWQ,SWO,SWS=44,48,52,56,60,64
vA,vB,vX,vW0,vW1=2,3,4,5,6
VK=8; VV=12; ONES=20; T=24; Q=32; O=80; L=176; MN=188; KV=200; S=232
XQ=[64*KB,88*KB,112*KB,136*KB]
e("s_cmp_ge_u32 s2, 256"); e("s_cbranch_scc1 L_end0")
stamp()
e("s_load_dwordx8 s[4:11], s[0:1], 0"); e("s_load_dwordx2 s[12:13], s[0:1], 32"); e("s_load_dwordx2 s[14:15], s[0:1], 56")
e("v_lshrrev_b32 v1, 6, v0"); e("v_and_b32 v0, 63, v0"); e("v_readfirstlane_b32 s3, v1")
e("s_and_b32 s16, s2, 7"); e("s_lshr_b32 s17, s2, 3")
e("s_lshr_b32 s18, s16, 2"); e("s_lshl_b32 s18, s18, 2"); e("s_lshr_b32 s19, s17, 3"); e("s_add_u32 s18, s18, s19")
e("s_and_b32 s19, s16, 3")
e("s_lshl_b32 s20, s19, 3"); e("s_and_b32 s21, s17, 7"); e("s_add_u32 s20, s20, s21")
e("s_mul_i32 s22, s18, 98304")
e("s_lshl_b32 s23, s20, 8"); e("s_lshl_b32 s24, s3, 16"); e("s_add_u32 s23, s23, s24")
e("s_lshl_b32 s25, s18, 2"); e("s_add_u32 s25, s25, s19"); e("s_lshl_b32 s25, s25, 19"); e("s_add_u32 s25, s25, s24")
e("s_lshl_b32 s28, s3, 12")
TG=int(os.environ.get('TG','0'))
W0=O; vX=O+4; TD=O+8
e("s_and_b32 s37, s3, 3")
e("s_lshl_b32 s26, s37, 10")
e("s_lshl_b32 s27, s37, 12")
e("s_lshl_b32 s23, s20, 8"); e("s_lshl_b32 s24, s37, 17"); e("s_add_u32 s23, s23, s24")
e(f"v_lshrrev_b32 v{T}, 5, v0"); e("s_lshl_b32 s29, s37, 1"); e(f"v_add_u32 v{T}, s29, v{T}")
e(f"v_lshlrev_b32 v{T+1}, 1, v{T}"); e(f"v_and_b32 v{T+2}, 31, v0"); e(f"v_xor_b32 v{T+1}, v{T+1}, v{T+2}")
e(f"v_lshlrev_b32 v{T+1}, 4, v{T+1}"); e(f"v_lshl_add_u32 v{vX}, v{T}, 11, v{T+1}")
e(f"v_lshrrev_b32 v{T}, 4, v0"); e(f"v_and_b32 v{T+2}, 15, v0")
e(f"v_lshlrev_b32 v{T+1}, 1, v{T}"); e(f"v_xor_b32 v{T+1}, v{T+1}, v{T+2}"); e(f"v_lshlrev_b32 v{T+1}, 4, v{T+1}")
e(f"v_lshl_add_u32 v{W0}, v{T}, 13, v{T+1}"); e(f"v_add_u32 v{W0+1}, {32768-1024}, v{W0}")
e(f"v_xor_b32 v{W0+2}, 128, v{W0}"); e(f"v_add_u32 v{W0+2}, {65536-2048}, v{W0+2}"); e(f"v_add_u32 v{W0+3}, {32768-1024}, v{W0+2}")
e(f"v_lshl_add_u32 v{vA}, v{T}, 8, v{T+1}"); e(f"v_xor_b32 v{vB}, 128, v{vA}")
e("s_waitcnt lgkmcnt(0)")
for srd,b,sz in [(SX,4,786432),(SWQ,10,8388608),(SK,6,16777216),(SV,8,16777216),(SWO,12,8388608),(SWS,14,WOP+8388608)]:
    e(f"s_mov_b32 s{srd}, s{b}"); e(f"s_mov_b32 s{srd+1}, s{b+1}"); e(f"s_mov_b32 s{srd+2}, {sz}"); e(f"s_mov_b32 s{srd+3}, 0x00020000")
def dma_x(q,t):
    e(f"s_add_u32 m0, s26, {XQ[q]+t*4096}"); e(f"s_add_u32 s30, s22, {t*16384+q*512}")
    e(f"buffer_load_dwordx4 v{vX}, s[{SX}:{SX+3}], s30 offen lds"); vm.issue(('x',q))
def dma_wq(s):
    e(f"s_add_u32 m0, s27, {(s&3)*16384}"); e(f"s_add_u32 s30, s23, {s*64*8192}")
    for i in range(4):
        e(f"buffer_load_dwordx4 v{W0+i}, s[{SWQ}:{SWQ+3}], s30 offen offset:{1024*i} lds"); vm.issue(('w',s))
def kv_items(srd,n):
    base=(64*KB+(n%3)*32*KB) if srd==SK else (n%2)*32*KB
    tag=('K' if srd==SK else 'V',n)
    def mk(i):
        def f():
            if i==0: e(f"s_add_u32 m0, s28, {base}"); e(f"s_add_u32 s30, s25, {n*4096}")
            if not (EXP==1 and n>2): e(f"buffer_load_dwordx4 v{vB if i&1 else vA}, s[{srd}:{srd+3}], s30 offen offset:{1024*i} lds")
            vm.issue(tag)
        return f
    return [mk(i) for i in range(4)]
def dma_kv(*a):
    for f in kv_items(*a): f()
XA=VV
def addr_setup():
    e(f"v_and_b32 v{T+3}, 7, v0"); e(f"v_lshlrev_b32 v{T+3}, 1, v{T+3}"); e(f"v_xor_b32 v{T+3}, v{T+3}, v{T}"); e(f"v_lshlrev_b32 v{T+3}, 4, v{T+3}")
    e(f"v_lshl_add_u32 v{T+4}, v{T+2}, 9, v{T+3}"); e(f"v_add_u32 v{T+4}, {XQ[0]}, v{T+4}")
    e(f"v_lshl_add_u32 v{T+5}, v{T+2}, 8, v{T+3}")
    e("s_add_u32 s29, s28, 65536"); e(f"v_add_u32 v{T+5}, s29, v{T+5}")
    for j in range(4):
        e(f"v_xor_b32 v{XA+j}, {64*j}, v{T+4}"); e(f"v_xor_b32 v{VK+j}, {64*j}, v{T+5}")
        e(f"v_mov_b32 v{ONES+j}, 0x3f803f80")
    e(f"v_bfe_u32 v{T+4}, v0, 2, 2"); e(f"v_and_b32 v{T+5}, 1, v{T}"); e(f"v_lshl_or_b32 v{T+5}, v{T+5}, 2, v{T+4}"); e(f"v_xor_b32 v{T+5}, s3, v{T+5}")
    e(f"v_lshl_add_u32 v{T+6}, v{T}, 3, v{T+4}"); e(f"v_lshlrev_b32 v{T+6}, 8, v{T+6}"); e(f"v_lshl_add_u32 v{T+6}, v{T+5}, 5, v{T+6}")
    e(f"v_and_b32 v{T+7}, 3, v0"); e(f"v_lshl_add_u32 v{XA+4}, v{T+7}, 3, v{T+6}")
xs={0:[(2,0)],1:[(2,1)],2:[(2,2)],3:[(2,3)],4:[(2,4),(3,0)],5:[(2,5),(3,1)],6:[(3,2)],7:[(3,3)],8:[(3,4)],9:[(3,5)]}
ACC=L
TWQ=int(os.environ.get('TWQ','1')); R0=int(os.environ.get('R0','2')); R1=int(os.environ.get('R1','8')); TWS=int(os.environ.get('TWS','3')); DD=int(os.environ.get('DD','4'))
tn=[1]
NT=int(os.environ.get('NT','16')); TB=int(os.environ.get('TB','16')); PRE=int(os.environ.get('PRE','0'))
def touch(srd,va,soff,off=0,dst=None):
    if dst is None: dst=TD+4+tn[0]; tn[0]+=1
    e(f"buffer_load_dword v{dst}, v{va}, s[{srd}:{srd+3}], {soff} offen offset:{off}"); vm.issue('t')
ROT=int(os.environ.get('ROT','1')); SC=os.environ.get('SC',' sc0 sc1')
e("s_mov_b32 s43, s25")
e(f"s_and_b32 s42, s21, {ROT-1}"); e(f"s_mul_i32 s42, s42, {65536//ROT}"); e("s_add_u32 s25, s43, s42")
def adv():
    e("s_add_u32 s42, s42, 8192"); e("s_and_b32 s42, s42, 65535"); e("s_add_u32 s31, s43, s42")
e("s_lshl_b32 s29, s18, 2"); e("s_add_u32 s29, s29, s19"); e("s_lshl_b32 s29, s29, 19"); e("s_lshl_b32 s30, s21, 16"); e("s_add_u32 s39, s29, s30")
SCH=[int(x) for x in os.environ.get('SCH','4,8,12,16,17,18,19,20').split(',')]
e("v_lshlrev_b32 v7, 7, v0"); e("s_lshl_b32 s29, s21, 13"); e("s_add_u32 s41, s43, s29")
lc=[0]
def stag(cond):
    lc[0]+=1
    e(cond); e(f"s_cbranch_scc1 L_st{lc[0]}")
    e(f"buffer_load_dword v1, v7, s[{SK}:{SK+3}], s41 offen"); e(f"buffer_load_dword v1, v7, s[{SV}:{SV+3}], s41 offen")
    lab(f"L_st{lc[0]}")
def stag_at(p):
    for j in range(8):
        if SCH[j]==p: stag(f"s_cmp_lg_u32 s21, {j}")
e("s_mov_b32 s40, 0")
for j in range(8):
    if SCH[j]>=17: e(f"s_cmp_eq_u32 s21, {j}"); e(f"s_cselect_b32 s40, {6-(SCH[j]-17)}, s40")
def qproj(loader):
    global vm
    vm=VM()
    if loader:
        for t in range(6): dma_x(0,t)
        for s in range(3): dma_wq(s)
        for t in range(6): dma_x(1,t)
    elif TG:
        e(f"v_lshrrev_b32 v{TD}, 1, v0"); e(f"v_lshlrev_b32 v{TD}, 13, v{TD}"); e(f"v_and_b32 v{TD+1}, 1, v0"); e(f"v_lshl_add_u32 v{TD}, v{TD+1}, 7, v{TD}")
        e("s_lshr_b32 s29, s17, 3"); e("s_lshl_b32 s29, s29, 19"); e("s_lshl_b32 s30, s20, 8"); e("s_add_u32 s38, s29, s30")
        e("s_lshr_b32 s29, s37, 1"); e("s_add_u32 s29, s29, 1"); e("s_lshl_b32 s29, s29, 21"); e("s_add_u32 s29, s29, s38")
        e("s_and_b32 s30, s37, 1"); e("s_lshl_b32 s30, s30, 18"); e("s_add_u32 s29, s29, s30")
        if TWQ: touch(SWQ,TD,"s29")
        e(f"v_lshrrev_b32 v{TD+2}, 2, v0"); e(f"v_lshlrev_b32 v{TD+2}, 13, v{TD+2}"); e(f"v_and_b32 v{TD+1}, 3, v0"); e(f"v_lshl_add_u32 v{TD+2}, v{TD+1}, 6, v{TD+2}")
        e("s_lshl_b32 s29, s37, 17"); e("s_add_u32 s38, s38, s29"); e(f"s_add_u32 s38, s38, {3<<21}")
        e(f"v_mul_u32_u24 v{TD+1}, {TB}, v0")
        e(f"s_mul_i32 s30, s37, {64*TB}"); e("s_add_u32 s40, s39, s30")
        if PRE: touch(SK,TD+1,"s40",dst=TD+4); touch(SV,TD+1,"s40",dst=TD+4); e(f"s_add_u32 s40, s40, {4*64*TB}")
    addr_setup()
    def mm(s):
        FA=(KV if s&1 else Q); FB=FA+8
        for ee in range(2):
            for qt in range(3): mfma(ACC+4*qt,FA+4*ee,FB+12*ee+4*qt,"0" if (s==0 and ee==0) else None)
    for s in range(16):
        if loader: vm.wait(('w',s),('x',s>>2))
        e("s_barrier")
        FA=(KV if s&1 else Q); FB=FA+8
        if s and s%4==0:
            for j in range(4): e(f"v_add_u32 v{XA+j}, {(XQ[s>>2]-XQ[(s>>2)-1])&0xffffffff}, v{XA+j}")
        for ee in range(2):
            ks=(s&3)*2+ee
            for hf in range(2): e(f"ds_read_b64_tr_b16 {r(FA+4*ee+2*hf,2)}, v{XA+4} offset:{(s&3)*16384+ee*8192+hf*1024}")
            for qt in range(3): e(f"ds_read_b128 {r(FB+12*ee+4*qt)}, v{XA+(ks&3)} offset:{qt*8192+(ks>>2)*256}")
        if s: mm(s-1)
        if loader:
            for a in xs.get(s,[]): dma_x(*a)
            if s+3<16: dma_wq(s+3)
        elif TG:
            if s==TWS and TWQ: touch(SWQ,TD+2,"s38")
            if s<NT:
                touch(SK,TD+1,"s40",dst=TD+4); touch(SV,TD+1,"s40",dst=TD+4); e(f"s_add_u32 s40, s40, {4*64*TB}")
        stag_at(s)
        if s==12: dma_kv(SK,0)
        if s==13: dma_kv(SK,1)
        if s==14: dma_kv(SV,0)
        e("s_waitcnt lgkmcnt(0)")
    mm(15)
e("s_cmp_ge_u32 s3, 4"); e("s_cbranch_scc1 L_touch")
qproj(True)
e("s_branch L_qdone")
lab("L_touch")
qproj(False)
lab("L_qdone")
stamp()
e(f"v_lshrrev_b32 v{T}, 4, v0"); e(f"v_and_b32 v{T+2}, 15, v0")
e(f"v_lshrrev_b32 v{T+1}, 1, v{T}"); e("s_lshl_b32 s29, s3, 1"); e(f"v_add_u32 v{T+1}, s29, v{T+1}")
e(f"v_and_b32 v{T+3}, 7, v0"); e(f"v_lshlrev_b32 v{T+3}, 1, v{T+3}"); e(f"v_xor_b32 v{T+1}, v{T+1}, v{T+3}"); e(f"v_lshlrev_b32 v{T+1}, 4, v{T+1}")
e(f"v_lshl_add_u32 v{T+1}, v{T+2}, 9, v{T+1}"); e(f"v_and_b32 v{T+3}, 1, v{T}"); e(f"v_lshl_add_u32 v{T+1}, v{T+3}, 3, v{T+1}"); e(f"v_add_u32 v{T+1}, {XQ[3]}, v{T+1}")
import struct, math
sc=struct.unpack('<I',struct.pack('<f',math.log2(math.e)/math.sqrt(128)))[0]
e(f"s_mov_b32 s29, {sc}")
for i in range(12): e(f"v_mul_f32 v{ACC+i}, s29, v{ACC+i}")
for qt in range(3):
    e(f"v_cvt_pk_bf16_f32 v{ACC+4*qt}, v{ACC+4*qt}, v{ACC+4*qt+1}"); e(f"v_cvt_pk_bf16_f32 v{ACC+4*qt+1}, v{ACC+4*qt+2}, v{ACC+4*qt+3}")
    e(f"ds_write_b64 v{T+1}, {r(ACC+4*qt,2)} offset:{qt*8192}")
e(f"v_lshrrev_b32 v{T}, 2, v0")
e(f"v_and_b32 v{T+2}, 7, v{T}"); e(f"v_lshlrev_b32 v{T+2}, 5, v{T+2}"); e(f"v_lshl_add_u32 v{T+2}, v{T}, 8, v{T+2}")
e(f"v_and_b32 v{T+3}, 3, v0"); e(f"v_lshl_add_u32 v{T+2}, v{T+3}, 3, v{T+2}"); e(f"v_add_u32 v{T+2}, s28, v{T+2}")
VKC=T+4
for j in range(4): e(f"v_add_u32 v{VKC+j}, 65536, v{VK+j}")
e("s_waitcnt lgkmcnt(0)"); e("s_barrier")
for s in range(4):
    for qt in range(3): e(f"ds_read_b128 {r(Q+12*s+4*qt)}, v{XA+s} offset:{qt*8192}")
dma_kv(SV,1)
for dt in range(8): e(f"v_xor_b32 v{VV+dt}, {32*dt}, v{T+2}")
e("s_waitcnt lgkmcnt(0)"); e("s_barrier")
dma_kv(SK,2)
stag_at(16)
PRIO=int(os.environ.get("PRIO","0"))
if PRIO:
    e("s_cmp_ge_u32 s3, 4"); e("s_cbranch_scc1 L_np"); e(f"s_setprio {PRIO}"); lab("L_np")
def xmax(qt,dst,tmp):
    b=S+8*qt
    e(f"v_max3_f32 v{dst}, v{b}, v{b+1}, v{b+2}"); e(f"v_max3_f32 v{tmp}, v{b+3}, v{b+4}, v{b+5}")
    e(f"v_max3_f32 v{dst}, v{dst}, v{b+6}, v{b+7}"); e(f"v_max_f32 v{dst}, v{dst}, v{tmp}")
    for op in ("v_permlane32_swap_b32","v_permlane16_swap_b32"):
        e(f"v_mov_b32 v{tmp}, v{dst}"); e("s_nop 1"); e(f"{op} v{dst}, v{tmp}"); e("s_nop 1"); e(f"v_max_f32 v{dst}, v{dst}, v{tmp}")
def wo_items():
    def mk(i):
        def f():
            if i==0:
                e(f"v_lshrrev_b32 v4, 3, v0"); e(f"v_lshlrev_b32 v4, 11, v4"); e(f"v_and_b32 v5, 7, v0"); e(f"v_lshl_add_u32 v4, v5, 4, v4")
                e("s_lshr_b32 s32, s2, 1"); e("s_and_b32 s33, s2, 1"); e("s_lshl_b32 s33, s33, 3"); e("s_add_u32 s33, s33, s3")
                e("s_lshl_b32 s34, s32, 16"); e("s_lshl_b32 s35, s33, 7"); e("s_add_u32 s34, s34, s35")
            e(f"s_add_u32 m0, s28, {96*KB+i*1024}"); e(f"s_add_u32 s30, s34, {i*16384}")
            e(f"buffer_load_dwordx4 v4, s[{SWO}:{SWO+3}], s30 offen lds"); vm.issue('WO')
        return f
    return [mk(i) for i in range(4)]
WOB=int(os.environ.get('WOB','7'))
def capture(fn):
    global o
    save=o; o=[]; fn(); res=o; o=save; return res
def softmax(j,qt):
    b=S+8*qt
    if j==0:
        xmax(qt,T,T+1)
        for i in range(8): e(f"v_sub_f32 v{b+i}, v{b+i}, v{T}")
        for i in range(4): e(f"v_sub_f32 v{MN+4*qt+i}, 0, v{T}")
    else:
        e(f"v_max3_f32 v{T}, v{b}, v{b+1}, v{b+2}"); e(f"v_max3_f32 v{T+1}, v{b+4}, v{b+5}, v{b+6}")
        e(f"v_max3_f32 v{T}, v{T}, v{b+3}, v{b+7}"); e(f"v_max_f32 v{T}, v{T}, v{T+1}")
        e(f"v_cmp_lt_f32 vcc, 0x41000000, v{T}")
        e(f"s_cbranch_vccnz L_rare{qt}\nL_back{j}_{qt}:")
    for i in range(8): e(f"v_exp_f32 v{b+i}, v{b+i}")
    for i in range(4): e(f"v_cvt_pk_bf16_f32 v{b+i}, v{b+2*i}, v{b+2*i+1}")
def merge(ms,vs,lead):
    n=len(ms)-lead; k=0
    for i,m in enumerate(ms):
        o.extend(m)
        if i>=lead-1:
            k2=len(vs) if i==len(ms)-1 else (len(vs)*(i-lead+2))//(n+1)
            o.extend(vs[k:k2]); k=k2
def block(j):
    if j: stag_at(16+j)
    vm.wait(('K',2*j+1))
    for s in range(4):
        for t in range(2):
            n=2*j+t
            if n%3==2: e(f"ds_read_b128 {r(KV+16*t+4*s)}, v{VKC+s}")
            else: e(f"ds_read_b128 {r(KV+16*t+4*s)}, v{VK+s} offset:{(n%3)*32768}")
    items=[kv_items(SK,n) if n<16 else [] for n in (2*j+3,2*j+4)]
    if j==WOB: items[1 if j==6 else 0]=wo_items()
    e(f"s_mov_b32 s36, {j}")
    for qt in range(3):
        ms=[]
        for s in range(4):
            for t in range(2):
                def f():
                    if qt==0 and t==0: e(f"s_waitcnt lgkmcnt({6-2*s})")
                    mfma(S+8*qt+4*t,KV+16*t+4*s,Q+12*s+4*qt,(("0" if j==0 else MN+4*qt) if s==0 else None))
                    if qt and t==0 and items[qt-1]: items[qt-1][s]()
                ms.append(capture(f))
        merge(ms,capture(lambda: softmax(j,qt-1)) if qt else [],3)
    vm.wait(('V',2*j+1))
    for dt in range(8):
        for t in range(2): e(f"ds_read_b64_tr_b16 {r(KV+4*dt+2*t,2)}, v{VV+dt} offset:{t*32768}")
    for qt in range(2): mfma(L+4*qt,ONES,S+8*qt,"0" if j==0 else None)
    softmax(j,2)
    if j==7:
        e(f"v_and_b32 v{T}, 15, v0"); e(f"v_lshlrev_b32 v{T}, 4, v{T}"); e(f"v_add_u32 v{T+3}, {128*KB}, v{T}"); e(f"v_add_u32 v{T+2}, s28, v{T+3}")
    items=(kv_items(SV,2*j+2)+kv_items(SV,2*j+3)) if j<7 else []
    for qt in range(3):
        if qt==2: mfma(L+8,ONES,S+16,"0" if j==0 else None)
        for dt in range(8):
            if qt==0 and dt%2==0: e(f"s_waitcnt lgkmcnt({12-2*dt})")
            mfma(O+12*dt+4*qt,KV+4*dt,S+8*qt,"0" if j==0 else None)
            if qt==1 and items: items.pop(0)()
            if qt==1 and j==7 and dt<3: e(f"ds_write_b32 v{T+2}, v{MN+4*dt} offset:{dt*4}")
for j in range(8):
    block(j)
    if j in (0,7): stamp()
e(f"v_lshrrev_b32 v{T+4}, 2, v0"); e(f"v_lshlrev_b32 v{T+4}, 7, v{T+4}"); e(f"v_and_b32 v{T+6}, 3, v0"); e(f"v_lshl_add_u32 v{T+4}, v{T+6}, 3, v{T+4}")
e(f"s_add_u32 s29, s28, {96*KB}"); e(f"v_add_u32 v{T+4}, s29, v{T+4}")
e(f"s_lshl_b32 s34, s33, 19"); e("s_lshl_b32 s35, s32, 11"); e("s_add_u32 s34, s34, s35"); e(f"s_add_u32 s34, s34, {WOP}"); e("s_add_u32 s35, s34, 262144")
e(f"v_lshlrev_b32 v{T+5}, 4, v0")
e("s_waitcnt vmcnt(0)")
for n4 in range(4):
    for hf in range(2): e(f"ds_read_b64_tr_b16 {r(Q+4*n4+2*hf,2)}, v{T+4} offset:{hf*2048+n4*32}")
e("s_waitcnt lgkmcnt(0)")
stamp()
e("s_barrier")
stamp()
for n4 in range(4): e(f"buffer_store_dwordx4 {r(Q+4*n4)}, v{T+5}, s[{SWS}:{SWS+3}], s{34+(n4>>1)} offen offset:{(n4&1)*1024}{SC}")
for u in range(8): e(f"ds_read_b128 {r(KV+4*u)}, v{T+3} offset:{u*4096}")
e(f"v_lshlrev_b32 v{T+4}, 3, v0"); e("s_lshl_b32 s29, s3, 9"); e(f"v_add_u32 v{T+5}, s29, v{T+4}")
e(f"v_add_u32 v{T+6}, 49152, v{T+5}")
e("s_mul_i32 s29, s3, 12288"); e(f"v_add_u32 v{T+7}, s29, v{T+4}")
e("s_waitcnt lgkmcnt(0)")
for qt in range(3):
    b=KV+qt; f=S+2*qt
    e(f"v_min3_f32 v{f}, v{b}, v{b+4}, v{b+8}"); e(f"v_min3_f32 v{f+1}, v{b+12}, v{b+16}, v{b+20}"); e(f"v_min3_f32 v{f}, v{f}, v{b+24}, v{b+28}"); e(f"v_min_f32 v{f}, v{f}, v{f+1}")
    e(f"v_sub_f32 v{f}, v{f}, v{MN+4*qt}"); e(f"v_exp_f32 v{f}, v{f}"); e("s_nop 0"); e(f"v_mov_b32 v{f+1}, v{f}")
    e(f"v_mul_f32 v{L+4*qt}, v{L+4*qt}, v{f}")
    e(f"ds_write_b32 v{T+2}, v{L+4*qt} offset:{1024+qt*4}")
for dt in range(8):
    for qt in range(3):
        a=O+12*dt+4*qt; b=S+2*qt
        e(f"v_pk_mul_f32 {r(a,2)}, {r(a,2)}, {r(b,2)}"); e(f"v_pk_mul_f32 {r(a+2,2)}, {r(a+2,2)}, {r(b,2)}")
        e(f"v_cvt_pk_bf16_f32 v{a}, v{a}, v{a+1}"); e(f"v_cvt_pk_bf16_f32 v{a+1}, v{a+2}, v{a+3}")
        off=(dt*3+qt)*4096
        e(f"ds_write_b64 v{T+5 if off<49152 else T+6}, {r(a,2)} offset:{off%49152}")
e(f"v_and_b32 v{T}, 1, v0"); e(f"v_lshlrev_b32 v{T}, 4, v{T}"); e(f"v_mov_b32 v{T+1}, 0x3f80"); e(f"v_lshlrev_b32 v{T}, v{T}, v{T+1}")
e(f"v_lshrrev_b32 v{T+1}, 4, v0"); e(f"v_lshlrev_b32 v{T+1}, 1, v{T+1}"); e(f"v_bfe_u32 v{T+4}, v0, 1, 3")
e(f"v_cmp_eq_u32 vcc, v{T+1}, v{T+4}"); e(f"v_add_u32 v{T+1}, 1, v{T+1}"); e("s_nop 0"); e(f"v_cndmask_b32 v{ONES}, 0, v{T}, vcc"); e(f"v_cndmask_b32 v{ONES+2}, 0, v{T}, vcc")
e(f"v_cmp_eq_u32 vcc, v{T+1}, v{T+4}"); e("s_nop 1"); e(f"v_cndmask_b32 v{ONES+1}, 0, v{T}, vcc"); e(f"v_cndmask_b32 v{ONES+3}, 0, v{T}, vcc")
e("s_lshl_b32 s29, s18, 5"); e("s_add_u32 s29, s29, s20"); e("s_lshl_b32 s29, s29, 2"); e("s_lshr_b32 s30, s3, 1"); e("s_add_u32 s29, s29, s30"); e("s_mul_i32 s29, s29, 3072")
e("s_and_b32 s30, s3, 1"); e("s_lshl_b32 s30, s30, 3"); e("s_add_u32 s29, s29, s30"); e(f"v_lshlrev_b32 v{T+5}, 4, v0")
e("s_waitcnt lgkmcnt(0)"); e("s_barrier")
stamp()
for u in range(8): e(f"ds_read_b128 {r(KV+4*u)}, v{T+3} offset:{1024+u*4096}")
for qt in range(3):
    for u in range(4): e(f"ds_read2st64_b64 {r(O+16*qt+4*u)}, v{T+7} offset0:{qt*8+2*u} offset1:{qt*8+2*u+1}")
e("s_waitcnt lgkmcnt(12)")
for st in (4,2,1):
    for u in range(st):
        e(f"v_pk_add_f32 {r(KV+4*u,2)}, {r(KV+4*u,2)}, {r(KV+4*(u+st),2)}"); e(f"v_add_f32 v{KV+4*u+2}, v{KV+4*u+2}, v{KV+4*(u+st)+2}")
for qt in range(3): e(f"v_rcp_f32 v{KV+qt}, v{KV+qt}")
e("s_waitcnt lgkmcnt(0)")
for u in range(4):
    for qt in range(3): mfma(S+4*qt,ONES,O+16*qt+4*u,"0" if u==0 else None)
e("s_nop 7")
for qt in range(3):
    a=S+4*qt
    for i in range(4): e(f"v_mul_f32 v{a+i}, v{a+i}, v{KV+qt}")
    e(f"v_cvt_pk_bf16_f32 v{a}, v{a}, v{a+1}"); e(f"v_cvt_pk_bf16_f32 v{a+1}, v{a+2}, v{a+3}")
    e(f"buffer_store_dwordx2 {r(a,2)}, v{T+5}, s[{SWS}:{SWS+3}], s29 offen offset:{qt*1024}{SC}")
stamp()
stamp_out(0,14,'s3')
lab("L_end0"); e("s_endpgm")
for qt in range(3):
    lab(f"L_rare{qt}")
    xmax(qt,T,T+1)
    e(f"v_max_f32 v{T}, 0, v{T}"); e(f"v_sub_f32 v{T+1}, 0, v{T}"); e(f"v_exp_f32 v{T+1}, v{T+1}")
    for i in range(4): e(f"v_sub_f32 v{MN+4*qt+i}, v{MN+4*qt+i}, v{T}")
    for i in range(8): e(f"v_sub_f32 v{S+8*qt+i}, v{S+8*qt+i}, v{T}")
    for i in range(4): e(f"v_mul_f32 v{L+4*qt+i}, v{L+4*qt+i}, v{T+1}")
    for dt in range(8):
        for i in range(4): e(f"v_mul_f32 v{O+12*dt+4*qt+i}, v{O+12*dt+4*qt+i}, v{T+1}")
    for j in range(1,7): e(f"s_cmp_eq_u32 s36, {j}"); e(f"s_cbranch_scc1 L_back{j}_{qt}")
    e(f"s_branch L_back7_{qt}")
o.append('.globl gqa_oproj_kernel\n.p2align 8\n.type gqa_oproj_kernel,@function\ngqa_oproj_kernel:')
e("s_cmp_ge_u32 s2, 256"); e("s_cbranch_scc1 L_end1")
stamp()
e("s_load_dwordx2 s[12:13], s[0:1], 40"); e("s_load_dwordx2 s[14:15], s[0:1], 56")
e("v_lshrrev_b32 v1, 6, v0"); e("v_and_b32 v0, 63, v0"); e("v_readfirstlane_b32 s3, v1"); e("v_lshlrev_b32 v2, 4, v0")
e("s_and_b32 s16, s2, 7"); e("s_lshr_b32 s17, s2, 3")
e("s_and_b32 s18, s16, 1"); e("s_lshl_b32 s18, s18, 2"); e("s_and_b32 s19, s17, 3"); e("s_add_u32 s18, s18, s19")
e("s_lshr_b32 s19, s16, 1"); e("s_lshl_b32 s19, s19, 3"); e("s_lshr_b32 s20, s17, 2"); e("s_add_u32 s19, s19, s20")
e("s_mul_i32 s22, s18, 393216"); e("s_mul_i32 s23, s3, 49152"); e("s_add_u32 s22, s22, s23")
e("s_lshl_b32 s23, s19, 18"); e("s_lshl_b32 s24, s3, 15"); e("s_add_u32 s23, s23, s24"); e(f"s_add_u32 s23, s23, {WOP}")
e("s_waitcnt lgkmcnt(0)")
for srd,b,sz in [(44,14,WOP+8388608),(48,12,786432)]:
    e(f"s_mov_b32 s{srd}, s{b}"); e(f"s_mov_b32 s{srd+1}, s{b+1}"); e(f"s_mov_b32 s{srd+2}, {sz}"); e(f"s_mov_b32 s{srd+3}, 0x00020000")
NB=11; BUF=32; AC=8
vm=VM()
def ld(k):
    b=BUF+20*(k%NB)
    e(f"s_add_u32 s25, s23, {k*2048}"); e(f"s_add_u32 s26, s22, {k*3072}")
    for n in range(2): e(f"buffer_load_dwordx4 {r(b+4*n)}, v2, s[44:47], s25 offen offset:{n*1024}"); vm.issue(k)
    for qt in range(3): e(f"buffer_load_dwordx4 {r(b+8+4*qt)}, v2, s[44:47], s26 offen offset:{qt*1024}"); vm.issue(k)
for k in range(NB): ld(k)
e("s_lshl_b32 s27, s3, 10"); e("v_add_u32 v3, s27, v2")
e("s_lshl_b32 s27, s3, 13"); e("v_add_u32 v4, s27, v2")
e("s_cmp_ge_u32 s3, 3"); e("s_cselect_b32 s28, 1, 0"); e("s_mul_i32 s29, s28, 3"); e("s_sub_u32 s29, s3, s29")
e("s_mul_i32 s30, s18, 98304"); e("s_lshl_b32 s29, s29, 15"); e("s_add_u32 s30, s30, s29"); e("s_lshl_b32 s29, s19, 6"); e("s_add_u32 s30, s30, s29")
e("s_lshl_b32 s29, s28, 5"); e("s_add_u32 s30, s30, s29")
e("v_and_b32 v5, 15, v0"); e("v_lshlrev_b32 v5, 11, v5"); e("v_lshrrev_b32 v6, 4, v0"); e("v_lshl_add_u32 v5, v6, 3, v5")
for k in range(16):
    vm.wait(k)
    b=BUF+20*(k%NB)
    for n in range(2):
        for qt in range(3): mfma(AC+12*n+4*qt,b+4*n,b+8+4*qt,"0" if k==0 else None)
    if k+NB<16: ld(k+NB)
stamp()
e("s_nop 7")
for t in range(6): e(f"ds_write_b128 v3, {r(AC+4*t)} offset:{t*8192}")
e("s_waitcnt lgkmcnt(0)"); e("s_barrier")
e("s_cmp_ge_u32 s3, 6"); e("s_cbranch_scc1 L_end1")
for u in range(8): e(f"ds_read_b128 {r(BUF+4*u)}, v4 offset:{u*1024}")
for st in (4,2,1):
    if st==4: e("s_waitcnt lgkmcnt(0)")
    for u in range(st):
        for h in range(2): e(f"v_pk_add_f32 {r(BUF+4*u+2*h,2)}, {r(BUF+4*u+2*h,2)}, {r(BUF+4*(u+st)+2*h,2)}")
e(f"v_cvt_pk_bf16_f32 v{BUF}, v{BUF}, v{BUF+1}"); e(f"v_cvt_pk_bf16_f32 v{BUF+1}, v{BUF+2}, v{BUF+3}")
e(f"buffer_store_dwordx2 {r(BUF,2)}, v5, s[48:51], s30 offen")
stamp()
stamp_out(1,14,'s3')
lab("L_end1"); e("s_endpgm")
o.append('.section .rodata,"a"')
for k in ("gqa_attn_kernel","gqa_oproj_kernel"):
    o.append(f'''.p2align 6
.amdhsa_kernel {k}
  .amdhsa_next_free_vgpr 256
  .amdhsa_next_free_sgpr 102
  .amdhsa_accum_offset 256
  .amdhsa_group_segment_fixed_size 0
  .amdhsa_kernarg_size 64
  .amdhsa_user_sgpr_count 2
  .amdhsa_user_sgpr_kernarg_segment_ptr 1
  .amdhsa_system_sgpr_workgroup_id_x 1
.end_amdhsa_kernel''')
print("\n".join(o))
```

```python
import sys, os
STAMP=int(os.environ.get('STAMP','0'))
SW=int(os.environ.get('SW','0'))
o=[]
EXP=int(os.environ.get('EXP','0'))
def e(s):
    o.append("    "+s)
def lab(s): o.append(s+":")
class VM:
    def __init__(s): s.q=[]
    def issue(s,tag): s.q.append(tag)
    def wait(s,*tags):
        idx=max(i for i,t in enumerate(s.q) if t in tags)
        n=len(s.q)-1-idx
        assert n<=63
        e(f"s_waitcnt vmcnt({n})")
def r(a,n=4): return f"v[{a}:{a+n-1}]"
def mfma(d,a,b,c=None):
    c = r(d) if c is None else (c if isinstance(c,str) else r(c))
    e(f"v_mfma_f32_16x16x32_bf16 {r(d)}, {r(a)}, {r(b)}, {c}")
nst=[0]
FUSE=int(os.environ.get('FUSE','0'))
SLP=int(os.environ.get('SLP','4'))
MAP=int(os.environ.get('MAP','1'))
def stamp(x=0):
    if STAMP and not (FUSE and x):
        e(f"s_memrealtime s[{80+2*nst[0]}:{81+2*nst[0]}]"); nst[0]+=1
def stamp_out(k,ws,wv):
    if not STAMP: return
    e("s_waitcnt lgkmcnt(0)")
    e(f"s_cmp_lg_u32 {wv}, {SW if k==0 else min(SW,5)}"); e(f"s_cbranch_scc1 L_end{k}")
    e(f"s_add_u32 s{ws}, s{ws}, {0x0F000000+k*0x10000}"); e(f"s_addc_u32 s{ws+1}, s{ws+1}, 0")
    e("s_lshl_b32 s4, s2, 6"); e("v_mov_b32 v1, s4")
    for i in range(nst[0]):
        e(f"v_mov_b32 v4, s{80+2*i}"); e(f"v_mov_b32 v5, s{81+2*i}")
        e(f"global_store_dwordx2 v1, v[4:5], s[{ws}:{ws+1}] offset:{8*i}"); e("s_nop 1")
    nst[0]=0
KB=1024
WOP=4*1024*1024
hdr=open('standalone__gqa_block_cached__near_ridge.s.ref').read().split('\n')
for l in hdr:
    if l.startswith('; @launch'):
        o.append("; @launch kernel=gqa_attn_kernel grid=(256,1,1) block=(512,1,1) lds=163840")
        if not FUSE: o.append("; @launch kernel=gqa_oproj_kernel grid=(256,1,1) block=(512,1,1) lds=49152")
    elif l.startswith(';'): o.append(l)
    else: break
o.append('.amdgcn_target "amdgcn-amd-amdhsa--gfx950"\n.text')
o.append('.globl gqa_attn_kernel\n.p2align 8\n.type gqa_attn_kernel,@function\ngqa_attn_kernel:')
SX,SK,SV,SWQ,SWO,SWS=44,48,52,56,60,64
vA,vB,vX,vW0,vW1=2,3,4,5,6
VK=8; VV=12; ONES=20; T=24; Q=32; O=80; L=176; MN=188; KV=200; S=232
XQ=[64*KB,88*KB,112*KB,136*KB]
e("s_cmp_ge_u32 s2, 256"); e("s_cbranch_scc1 L_end0")
stamp()
e("s_load_dwordx8 s[4:11], s[0:1], 0"); e("s_load_dwordx2 s[12:13], s[0:1], 32"); e("s_load_dwordx2 s[14:15], s[0:1], 56")
if FUSE: e("s_load_dwordx2 s[68:69], s[0:1], 40"); e("s_load_dwordx2 s[72:73], s[0:1], 48")
e("v_lshrrev_b32 v1, 6, v0"); e("v_and_b32 v0, 63, v0"); e("v_readfirstlane_b32 s3, v1")
e("s_and_b32 s16, s2, 7"); e("s_lshr_b32 s17, s2, 3")
e("s_lshr_b32 s18, s16, 2"); e("s_lshl_b32 s18, s18, 2"); e("s_lshr_b32 s19, s17, 3"); e("s_add_u32 s18, s18, s19")
e("s_and_b32 s19, s16, 3")
e("s_lshl_b32 s20, s19, 3"); e("s_and_b32 s21, s17, 7"); e("s_add_u32 s20, s20, s21")
e("s_mul_i32 s22, s18, 98304")
e("s_lshl_b32 s23, s20, 8"); e("s_lshl_b32 s24, s3, 16"); e("s_add_u32 s23, s23, s24")
e("s_lshl_b32 s25, s18, 2"); e("s_add_u32 s25, s25, s19"); e("s_lshl_b32 s25, s25, 19"); e("s_add_u32 s25, s25, s24")
e("s_lshl_b32 s28, s3, 12")
TG=int(os.environ.get('TG','0'))
W0=O; vX=O+4; TD=O+8
e("s_and_b32 s37, s3, 3")
e("s_lshl_b32 s26, s37, 10")
e("s_lshl_b32 s27, s37, 12")
e("s_lshl_b32 s23, s20, 8"); e("s_lshl_b32 s24, s37, 17"); e("s_add_u32 s23, s23, s24")
e(f"v_lshrrev_b32 v{T}, 5, v0"); e("s_lshl_b32 s29, s37, 1"); e(f"v_add_u32 v{T}, s29, v{T}")
e(f"v_lshlrev_b32 v{T+1}, 1, v{T}"); e(f"v_and_b32 v{T+2}, 31, v0"); e(f"v_xor_b32 v{T+1}, v{T+1}, v{T+2}")
e(f"v_lshlrev_b32 v{T+1}, 4, v{T+1}"); e(f"v_lshl_add_u32 v{vX}, v{T}, 11, v{T+1}")
e(f"v_lshrrev_b32 v{T}, 4, v0"); e(f"v_and_b32 v{T+2}, 15, v0")
e(f"v_lshlrev_b32 v{T+1}, 1, v{T}"); e(f"v_xor_b32 v{T+1}, v{T+1}, v{T+2}"); e(f"v_lshlrev_b32 v{T+1}, 4, v{T+1}")
e(f"v_lshl_add_u32 v{W0}, v{T}, 13, v{T+1}"); e(f"v_add_u32 v{W0+1}, {32768-1024}, v{W0}")
e(f"v_xor_b32 v{W0+2}, 128, v{W0}"); e(f"v_add_u32 v{W0+2}, {65536-2048}, v{W0+2}"); e(f"v_add_u32 v{W0+3}, {32768-1024}, v{W0+2}")
e(f"v_lshl_add_u32 v{vA}, v{T}, 8, v{T+1}"); e(f"v_xor_b32 v{vB}, 128, v{vA}")
e("s_waitcnt lgkmcnt(0)")
for srd,b,sz in [(SX,4,786432),(SWQ,10,8388608),(SK,6,16777216),(SV,8,16777216),(SWO,12,8388608),(SWS,14,WOP+8388608)]:
    e(f"s_mov_b32 s{srd}, s{b}"); e(f"s_mov_b32 s{srd+1}, s{b+1}"); e(f"s_mov_b32 s{srd+2}, {sz}"); e(f"s_mov_b32 s{srd+3}, 0x00020000")
def dma_x(q,t):
    e(f"s_add_u32 m0, s26, {XQ[q]+t*4096}"); e(f"s_add_u32 s30, s22, {t*16384+q*512}")
    e(f"buffer_load_dwordx4 v{vX}, s[{SX}:{SX+3}], s30 offen lds"); vm.issue(('x',q))
def dma_wq(s):
    e(f"s_add_u32 m0, s27, {(s&3)*16384}"); e(f"s_add_u32 s30, s23, {s*64*8192}")
    for i in range(4):
        e(f"buffer_load_dwordx4 v{W0+i}, s[{SWQ}:{SWQ+3}], s30 offen offset:{1024*i} lds"); vm.issue(('w',s))
def kv_items(srd,n):
    base=(64*KB+(n%3)*32*KB) if srd==SK else (n%2)*32*KB
    tag=('K' if srd==SK else 'V',n)
    def mk(i):
        def f():
            if i==0: e(f"s_add_u32 m0, s28, {base}"); e(f"s_add_u32 s30, s25, {n*4096}")
            if not (EXP==1 and n>2): e(f"buffer_load_dwordx4 v{vB if i&1 else vA}, s[{srd}:{srd+3}], s30 offen offset:{1024*i} lds")
            vm.issue(tag)
        return f
    return [mk(i) for i in range(4)]
def dma_kv(*a):
    for f in kv_items(*a): f()
XA=VV
def addr_setup():
    e(f"v_and_b32 v{T+3}, 7, v0"); e(f"v_lshlrev_b32 v{T+3}, 1, v{T+3}"); e(f"v_xor_b32 v{T+3}, v{T+3}, v{T}"); e(f"v_lshlrev_b32 v{T+3}, 4, v{T+3}")
    e(f"v_lshl_add_u32 v{T+4}, v{T+2}, 9, v{T+3}"); e(f"v_add_u32 v{T+4}, {XQ[0]}, v{T+4}")
    e(f"v_lshl_add_u32 v{T+5}, v{T+2}, 8, v{T+3}")
    e("s_add_u32 s29, s28, 65536"); e(f"v_add_u32 v{T+5}, s29, v{T+5}")
    for j in range(4):
        e(f"v_xor_b32 v{XA+j}, {64*j}, v{T+4}"); e(f"v_xor_b32 v{VK+j}, {64*j}, v{T+5}")
        e(f"v_mov_b32 v{ONES+j}, 0x3f803f80")
    e(f"v_bfe_u32 v{T+4}, v0, 2, 2"); e(f"v_and_b32 v{T+5}, 1, v{T}"); e(f"v_lshl_or_b32 v{T+5}, v{T+5}, 2, v{T+4}"); e(f"v_xor_b32 v{T+5}, s3, v{T+5}")
    e(f"v_lshl_add_u32 v{T+6}, v{T}, 3, v{T+4}"); e(f"v_lshlrev_b32 v{T+6}, 8, v{T+6}"); e(f"v_lshl_add_u32 v{T+6}, v{T+5}, 5, v{T+6}")
    e(f"v_and_b32 v{T+7}, 3, v0"); e(f"v_lshl_add_u32 v{XA+4}, v{T+7}, 3, v{T+6}")
xs={0:[(2,0)],1:[(2,1)],2:[(2,2)],3:[(2,3)],4:[(2,4),(3,0)],5:[(2,5),(3,1)],6:[(3,2)],7:[(3,3)],8:[(3,4)],9:[(3,5)]}
ACC=L
TWQ=int(os.environ.get('TWQ','1')); R0=int(os.environ.get('R0','2')); R1=int(os.environ.get('R1','8')); TWS=int(os.environ.get('TWS','3')); DD=int(os.environ.get('DD','4'))
tn=[1]
NT=int(os.environ.get('NT','16')); TB=int(os.environ.get('TB','16')); PRE=int(os.environ.get('PRE','0'))
def touch(srd,va,soff,off=0,dst=None):
    if dst is None: dst=TD+4+tn[0]; tn[0]+=1
    e(f"buffer_load_dword v{dst}, v{va}, s[{srd}:{srd+3}], {soff} offen offset:{off}"); vm.issue('t')
ROT=int(os.environ.get('ROT','1')); SC=os.environ.get('SC',' sc0 sc1')
e("s_mov_b32 s43, s25")
e(f"s_and_b32 s42, s21, {ROT-1}"); e(f"s_mul_i32 s42, s42, {65536//ROT}"); e("s_add_u32 s25, s43, s42")
def adv():
    e("s_add_u32 s42, s42, 8192"); e("s_and_b32 s42, s42, 65535"); e("s_add_u32 s31, s43, s42")
e("s_lshl_b32 s29, s18, 2"); e("s_add_u32 s29, s29, s19"); e("s_lshl_b32 s29, s29, 19"); e("s_lshl_b32 s30, s21, 16"); e("s_add_u32 s39, s29, s30")
SCH=[int(x) for x in os.environ.get('SCH','4,8,12,16,17,18,19,20').split(',')]
e("v_lshlrev_b32 v7, 7, v0"); e("s_lshl_b32 s29, s21, 13"); e("s_add_u32 s41, s43, s29")
lc=[0]
def stag(cond):
    lc[0]+=1
    e(cond); e(f"s_cbranch_scc1 L_st{lc[0]}")
    e(f"buffer_load_dword v1, v7, s[{SK}:{SK+3}], s41 offen"); e(f"buffer_load_dword v1, v7, s[{SV}:{SV+3}], s41 offen")
    lab(f"L_st{lc[0]}")
def stag_at(p):
    for j in range(8):
        if SCH[j]==p: stag(f"s_cmp_lg_u32 s21, {j}")
e("s_mov_b32 s40, 0")
for j in range(8):
    if SCH[j]>=17: e(f"s_cmp_eq_u32 s21, {j}"); e(f"s_cselect_b32 s40, {6-(SCH[j]-17)}, s40")
def qproj(loader):
    global vm
    vm=VM()
    if loader:
        for t in range(6): dma_x(0,t)
        for s in range(3): dma_wq(s)
        for t in range(6): dma_x(1,t)
    elif TG:
        e(f"v_lshrrev_b32 v{TD}, 1, v0"); e(f"v_lshlrev_b32 v{TD}, 13, v{TD}"); e(f"v_and_b32 v{TD+1}, 1, v0"); e(f"v_lshl_add_u32 v{TD}, v{TD+1}, 7, v{TD}")
        e("s_lshr_b32 s29, s17, 3"); e("s_lshl_b32 s29, s29, 19"); e("s_lshl_b32 s30, s20, 8"); e("s_add_u32 s38, s29, s30")
        e("s_lshr_b32 s29, s37, 1"); e("s_add_u32 s29, s29, 1"); e("s_lshl_b32 s29, s29, 21"); e("s_add_u32 s29, s29, s38")
        e("s_and_b32 s30, s37, 1"); e("s_lshl_b32 s30, s30, 18"); e("s_add_u32 s29, s29, s30")
        if TWQ: touch(SWQ,TD,"s29")
        e(f"v_lshrrev_b32 v{TD+2}, 2, v0"); e(f"v_lshlrev_b32 v{TD+2}, 13, v{TD+2}"); e(f"v_and_b32 v{TD+1}, 3, v0"); e(f"v_lshl_add_u32 v{TD+2}, v{TD+1}, 6, v{TD+2}")
        e("s_lshl_b32 s29, s37, 17"); e("s_add_u32 s38, s38, s29"); e(f"s_add_u32 s38, s38, {3<<21}")
        e(f"v_mul_u32_u24 v{TD+1}, {TB}, v0")
        e(f"s_mul_i32 s30, s37, {64*TB}"); e("s_add_u32 s40, s39, s30")
        if PRE: touch(SK,TD+1,"s40",dst=TD+4); touch(SV,TD+1,"s40",dst=TD+4); e(f"s_add_u32 s40, s40, {4*64*TB}")
    addr_setup()
    def mm(s):
        FA=(KV if s&1 else Q); FB=FA+8
        for ee in range(2):
            for qt in range(3): mfma(ACC+4*qt,FA+4*ee,FB+12*ee+4*qt,"0" if (s==0 and ee==0) else None)
    for s in range(16):
        if loader: vm.wait(('w',s),('x',s>>2))
        e("s_barrier")
        FA=(KV if s&1 else Q); FB=FA+8
        if s and s%4==0:
            for j in range(4): e(f"v_add_u32 v{XA+j}, {(XQ[s>>2]-XQ[(s>>2)-1])&0xffffffff}, v{XA+j}")
        for ee in range(2):
            ks=(s&3)*2+ee
            for hf in range(2): e(f"ds_read_b64_tr_b16 {r(FA+4*ee+2*hf,2)}, v{XA+4} offset:{(s&3)*16384+ee*8192+hf*1024}")
            for qt in range(3): e(f"ds_read_b128 {r(FB+12*ee+4*qt)}, v{XA+(ks&3)} offset:{qt*8192+(ks>>2)*256}")
        if s: mm(s-1)
        if loader:
            for a in xs.get(s,[]): dma_x(*a)
            if s+3<16: dma_wq(s+3)
        elif TG:
            if s==TWS and TWQ: touch(SWQ,TD+2,"s38")
            if s<NT:
                touch(SK,TD+1,"s40",dst=TD+4); touch(SV,TD+1,"s40",dst=TD+4); e(f"s_add_u32 s40, s40, {4*64*TB}")
        stag_at(s)
        if s==12: dma_kv(SK,0)
        if s==13: dma_kv(SK,1)
        if s==14: dma_kv(SV,0)
        e("s_waitcnt lgkmcnt(0)")
    mm(15)
e("s_cmp_ge_u32 s3, 4"); e("s_cbranch_scc1 L_touch")
qproj(True)
e("s_branch L_qdone")
lab("L_touch")
qproj(False)
lab("L_qdone")
stamp()
e(f"v_lshrrev_b32 v{T}, 4, v0"); e(f"v_and_b32 v{T+2}, 15, v0")
e(f"v_lshrrev_b32 v{T+1}, 1, v{T}"); e("s_lshl_b32 s29, s3, 1"); e(f"v_add_u32 v{T+1}, s29, v{T+1}")
e(f"v_and_b32 v{T+3}, 7, v0"); e(f"v_lshlrev_b32 v{T+3}, 1, v{T+3}"); e(f"v_xor_b32 v{T+1}, v{T+1}, v{T+3}"); e(f"v_lshlrev_b32 v{T+1}, 4, v{T+1}")
e(f"v_lshl_add_u32 v{T+1}, v{T+2}, 9, v{T+1}"); e(f"v_and_b32 v{T+3}, 1, v{T}"); e(f"v_lshl_add_u32 v{T+1}, v{T+3}, 3, v{T+1}"); e(f"v_add_u32 v{T+1}, {XQ[3]}, v{T+1}")
import struct, math
sc=struct.unpack('<I',struct.pack('<f',math.log2(math.e)/math.sqrt(128)))[0]
e(f"s_mov_b32 s29, {sc}")
for i in range(12): e(f"v_mul_f32 v{ACC+i}, s29, v{ACC+i}")
for qt in range(3):
    e(f"v_cvt_pk_bf16_f32 v{ACC+4*qt}, v{ACC+4*qt}, v{ACC+4*qt+1}"); e(f"v_cvt_pk_bf16_f32 v{ACC+4*qt+1}, v{ACC+4*qt+2}, v{ACC+4*qt+3}")
    e(f"ds_write_b64 v{T+1}, {r(ACC+4*qt,2)} offset:{qt*8192}")
e(f"v_lshrrev_b32 v{T}, 2, v0")
e(f"v_and_b32 v{T+2}, 7, v{T}"); e(f"v_lshlrev_b32 v{T+2}, 5, v{T+2}"); e(f"v_lshl_add_u32 v{T+2}, v{T}, 8, v{T+2}")
e(f"v_and_b32 v{T+3}, 3, v0"); e(f"v_lshl_add_u32 v{T+2}, v{T+3}, 3, v{T+2}"); e(f"v_add_u32 v{T+2}, s28, v{T+2}")
VKC=T+4
for j in range(4): e(f"v_add_u32 v{VKC+j}, 65536, v{VK+j}")
e("s_waitcnt lgkmcnt(0)"); e("s_barrier")
for s in range(4):
    for qt in range(3): e(f"ds_read_b128 {r(Q+12*s+4*qt)}, v{XA+s} offset:{qt*8192}")
dma_kv(SV,1)
for dt in range(8): e(f"v_xor_b32 v{VV+dt}, {32*dt}, v{T+2}")
e("s_waitcnt lgkmcnt(0)"); e("s_barrier")
dma_kv(SK,2)
stag_at(16)
PRIO=int(os.environ.get("PRIO","0"))
if PRIO:
    e("s_cmp_ge_u32 s3, 4"); e("s_cbranch_scc1 L_np"); e(f"s_setprio {PRIO}"); lab("L_np")
def xmax(qt,dst,tmp):
    b=S+8*qt
    e(f"v_max3_f32 v{dst}, v{b}, v{b+1}, v{b+2}"); e(f"v_max3_f32 v{tmp}, v{b+3}, v{b+4}, v{b+5}")
    e(f"v_max3_f32 v{dst}, v{dst}, v{b+6}, v{b+7}"); e(f"v_max_f32 v{dst}, v{dst}, v{tmp}")
    for op in ("v_permlane32_swap_b32","v_permlane16_swap_b32"):
        e(f"v_mov_b32 v{tmp}, v{dst}"); e("s_nop 1"); e(f"{op} v{dst}, v{tmp}"); e("s_nop 1"); e(f"v_max_f32 v{dst}, v{dst}, v{tmp}")
def wo_items():
    def mk(i):
        def f():
            if i==0:
                e(f"v_lshrrev_b32 v4, 3, v0"); e(f"v_lshlrev_b32 v4, 11, v4"); e(f"v_and_b32 v5, 7, v0"); e(f"v_lshl_add_u32 v4, v5, 4, v4")
                e("s_lshl_b32 s76, s18, 5"); e("s_add_u32 s76, s76, s20"); e("s_and_b32 s32, s76, 127"); e("s_lshr_b32 s33, s76, 7"); e("s_lshl_b32 s33, s33, 3"); e("s_add_u32 s33, s33, s3")
                if MAP:
                    e("s_lshl_b32 s33, s19, 2"); e("s_and_b32 s32, s3, 3"); e("s_add_u32 s33, s33, s32")
                    e("s_lshr_b32 s32, s16, 2"); e("s_lshl_b32 s32, s32, 5"); e("s_add_u32 s32, s32, s17"); e("s_lshl_b32 s32, s32, 1"); e("s_lshr_b32 s34, s3, 2"); e("s_add_u32 s32, s32, s34")
                e("s_lshl_b32 s34, s32, 16"); e("s_lshl_b32 s35, s33, 7"); e("s_add_u32 s34, s34, s35")
            e(f"s_add_u32 m0, s28, {96*KB+i*1024}"); e(f"s_add_u32 s30, s34, {i*16384}")
            e(f"buffer_load_dwordx4 v4, s[{SWO}:{SWO+3}], s30 offen lds"); vm.issue('WO')
        return f
    return [mk(i) for i in range(4)]
WOB=int(os.environ.get('WOB','7'))
def capture(fn):
    global o
    save=o; o=[]; fn(); res=o; o=save; return res
def softmax(j,qt):
    b=S+8*qt
    if j==0:
        xmax(qt,T,T+1)
        for i in range(8): e(f"v_sub_f32 v{b+i}, v{b+i}, v{T}")
        for i in range(4): e(f"v_sub_f32 v{MN+4*qt+i}, 0, v{T}")
    else:
        e(f"v_max3_f32 v{T}, v{b}, v{b+1}, v{b+2}"); e(f"v_max3_f32 v{T+1}, v{b+4}, v{b+5}, v{b+6}")
        e(f"v_max3_f32 v{T}, v{T}, v{b+3}, v{b+7}"); e(f"v_max_f32 v{T}, v{T}, v{T+1}")
        e(f"v_cmp_lt_f32 vcc, 0x41000000, v{T}")
        e(f"s_cbranch_vccnz L_rare{qt}\nL_back{j}_{qt}:")
    for i in range(8): e(f"v_exp_f32 v{b+i}, v{b+i}")
    for i in range(4): e(f"v_cvt_pk_bf16_f32 v{b+i}, v{b+2*i}, v{b+2*i+1}")
def merge(ms,vs,lead):
    n=len(ms)-lead; k=0
    for i,m in enumerate(ms):
        o.extend(m)
        if i>=lead-1:
            k2=len(vs) if i==len(ms)-1 else (len(vs)*(i-lead+2))//(n+1)
            o.extend(vs[k:k2]); k=k2
def block(j):
    if j: stag_at(16+j)
    vm.wait(('K',2*j+1))
    for s in range(4):
        for t in range(2):
            n=2*j+t
            if n%3==2: e(f"ds_read_b128 {r(KV+16*t+4*s)}, v{VKC+s}")
            else: e(f"ds_read_b128 {r(KV+16*t+4*s)}, v{VK+s} offset:{(n%3)*32768}")
    items=[kv_items(SK,n) if n<16 else [] for n in (2*j+3,2*j+4)]
    if j==WOB: items[1 if j==6 else 0]=wo_items()
    e(f"s_mov_b32 s36, {j}")
    for qt in range(3):
        ms=[]
        for s in range(4):
            for t in range(2):
                def f():
                    if qt==0 and t==0: e(f"s_waitcnt lgkmcnt({6-2*s})")
                    mfma(S+8*qt+4*t,KV+16*t+4*s,Q+12*s+4*qt,(("0" if j==0 else MN+4*qt) if s==0 else None))
                    if qt and t==0 and items[qt-1]: items[qt-1][s]()
                ms.append(capture(f))
        merge(ms,capture(lambda: softmax(j,qt-1)) if qt else [],3)
    vm.wait(('V',2*j+1))
    for dt in range(8):
        for t in range(2): e(f"ds_read_b64_tr_b16 {r(KV+4*dt+2*t,2)}, v{VV+dt} offset:{t*32768}")
    for qt in range(2): mfma(L+4*qt,ONES,S+8*qt,"0" if j==0 else None)
    softmax(j,2)
    if j==7:
        e(f"v_and_b32 v{T}, 15, v0"); e(f"v_lshlrev_b32 v{T}, 4, v{T}"); e(f"v_add_u32 v{T+3}, {128*KB}, v{T}"); e(f"v_add_u32 v{T+2}, s28, v{T+3}")
    items=(kv_items(SV,2*j+2)+kv_items(SV,2*j+3)) if j<7 else []
    for qt in range(3):
        if qt==2: mfma(L+8,ONES,S+16,"0" if j==0 else None)
        for dt in range(8):
            if qt==0 and dt%2==0: e(f"s_waitcnt lgkmcnt({12-2*dt})")
            mfma(O+12*dt+4*qt,KV+4*dt,S+8*qt,"0" if j==0 else None)
            if qt==1 and items: items.pop(0)()
            if qt==1 and j==7 and dt<3: e(f"ds_write_b32 v{T+2}, v{MN+4*dt} offset:{dt*4}")
for j in range(8):
    block(j)
    if j in (0,7): stamp(j==0)
e(f"v_lshrrev_b32 v{T+4}, 2, v0"); e(f"v_lshlrev_b32 v{T+4}, 7, v{T+4}"); e(f"v_and_b32 v{T+6}, 3, v0"); e(f"v_lshl_add_u32 v{T+4}, v{T+6}, 3, v{T+4}")
e(f"s_add_u32 s29, s28, {96*KB}"); e(f"v_add_u32 v{T+4}, s29, v{T+4}")
e(f"s_lshl_b32 s34, s33, 19"); e("s_lshl_b32 s35, s32, 11"); e("s_add_u32 s34, s34, s35"); e(f"s_add_u32 s34, s34, {WOP}"); e("s_add_u32 s35, s34, 262144")
e(f"v_lshlrev_b32 v{T+5}, 4, v0")
e("s_waitcnt vmcnt(0)")
for n4 in range(4):
    for hf in range(2): e(f"ds_read_b64_tr_b16 {r(Q+4*n4+2*hf,2)}, v{T+4} offset:{hf*2048+n4*32}")
e("s_waitcnt lgkmcnt(0)")
stamp(1)
e("s_barrier")
stamp(1)
for n4 in range(4): e(f"buffer_store_dwordx4 {r(Q+4*n4)}, v{T+5}, s[{SWS}:{SWS+3}], s{34+(n4>>1)} offen offset:{(n4&1)*1024}{SC}")
for u in range(8): e(f"ds_read_b128 {r(KV+4*u)}, v{T+3} offset:{u*4096}")
e(f"v_lshlrev_b32 v{T+4}, 3, v0"); e("s_lshl_b32 s29, s3, 9"); e(f"v_add_u32 v{T+5}, s29, v{T+4}")
e(f"v_add_u32 v{T+6}, 49152, v{T+5}")
e("s_mul_i32 s29, s3, 12288"); e(f"v_add_u32 v{T+7}, s29, v{T+4}")
e("s_waitcnt lgkmcnt(0)")
for qt in range(3):
    b=KV+qt; f=S+2*qt
    e(f"v_min3_f32 v{f}, v{b}, v{b+4}, v{b+8}"); e(f"v_min3_f32 v{f+1}, v{b+12}, v{b+16}, v{b+20}"); e(f"v_min3_f32 v{f}, v{f}, v{b+24}, v{b+28}"); e(f"v_min_f32 v{f}, v{f}, v{f+1}")
    e(f"v_sub_f32 v{f}, v{f}, v{MN+4*qt}"); e(f"v_exp_f32 v{f}, v{f}"); e("s_nop 0"); e(f"v_mov_b32 v{f+1}, v{f}")
    e(f"v_mul_f32 v{L+4*qt}, v{L+4*qt}, v{f}")
    e(f"ds_write_b32 v{T+2}, v{L+4*qt} offset:{1024+qt*4}")
for dt in range(8):
    for qt in range(3):
        a=O+12*dt+4*qt; b=S+2*qt
        e(f"v_pk_mul_f32 {r(a,2)}, {r(a,2)}, {r(b,2)}"); e(f"v_pk_mul_f32 {r(a+2,2)}, {r(a+2,2)}, {r(b,2)}")
        e(f"v_cvt_pk_bf16_f32 v{a}, v{a}, v{a+1}"); e(f"v_cvt_pk_bf16_f32 v{a+1}, v{a+2}, v{a+3}")
        off=(dt*3+qt)*4096
        e(f"ds_write_b64 v{T+5 if off<49152 else T+6}, {r(a,2)} offset:{off%49152}")
e(f"v_and_b32 v{T}, 1, v0"); e(f"v_lshlrev_b32 v{T}, 4, v{T}"); e(f"v_mov_b32 v{T+1}, 0x3f80"); e(f"v_lshlrev_b32 v{T}, v{T}, v{T+1}")
e(f"v_lshrrev_b32 v{T+1}, 4, v0"); e(f"v_lshlrev_b32 v{T+1}, 1, v{T+1}"); e(f"v_bfe_u32 v{T+4}, v0, 1, 3")
e(f"v_cmp_eq_u32 vcc, v{T+1}, v{T+4}"); e(f"v_add_u32 v{T+1}, 1, v{T+1}"); e("s_nop 0"); e(f"v_cndmask_b32 v{ONES}, 0, v{T}, vcc"); e(f"v_cndmask_b32 v{ONES+2}, 0, v{T}, vcc")
e(f"v_cmp_eq_u32 vcc, v{T+1}, v{T+4}"); e("s_nop 1"); e(f"v_cndmask_b32 v{ONES+1}, 0, v{T}, vcc"); e(f"v_cndmask_b32 v{ONES+3}, 0, v{T}, vcc")
e("s_lshl_b32 s29, s18, 5"); e("s_add_u32 s29, s29, s20"); e("s_lshl_b32 s29, s29, 2"); e("s_lshr_b32 s30, s3, 1"); e("s_add_u32 s29, s29, s30"); e("s_mul_i32 s29, s29, 3072")
e("s_and_b32 s30, s3, 1"); e("s_lshl_b32 s30, s30, 3"); e("s_add_u32 s29, s29, s30"); e(f"v_lshlrev_b32 v{T+5}, 4, v0")
def flag(val,k):
    e("s_cmp_lg_u32 s3, 0"); e(f"s_cbranch_scc1 L_fl{k}")
    e("s_mov_b64 exec, 1"); e("v_mov_b32 v6, 0"); e(f"v_mov_b32 v7, {val}")
    if os.environ.get('AT','1')=='1':
        e("s_and_b32 s77, s76, 3"); e("s_lshl_b32 s77, s77, 3"); e("v_lshlrev_b32 v7, s77, v7"); e("s_and_b32 s77, s76, 252")
        e("buffer_atomic_or v7, v6, s[72:75], s77 offen sc1")
    else: e("buffer_store_byte v7, v6, s[72:75], s76 offen sc0 sc1")
    e("s_mov_b64 exec, -1")
    lab(f"L_fl{k}")
if FUSE:
    e("s_mov_b32 s74, 256"); e("s_mov_b32 s75, 0x00020000"); e("s_mov_b32 s70, 786432"); e("s_mov_b32 s71, 0x00020000")
    e("s_waitcnt vmcnt(0)")
e("s_waitcnt lgkmcnt(0)"); e("s_barrier")
stamp(1)
if FUSE: flag(1,0)
for u in range(8): e(f"ds_read_b128 {r(KV+4*u)}, v{T+3} offset:{1024+u*4096}")
for qt in range(3):
    for u in range(4): e(f"ds_read2st64_b64 {r(O+16*qt+4*u)}, v{T+7} offset0:{qt*8+2*u} offset1:{qt*8+2*u+1}")
e("s_waitcnt lgkmcnt(12)")
for st in (4,2,1):
    for u in range(st):
        e(f"v_pk_add_f32 {r(KV+4*u,2)}, {r(KV+4*u,2)}, {r(KV+4*(u+st),2)}"); e(f"v_add_f32 v{KV+4*u+2}, v{KV+4*u+2}, v{KV+4*(u+st)+2}")
for qt in range(3): e(f"v_rcp_f32 v{KV+qt}, v{KV+qt}")
e("s_waitcnt lgkmcnt(0)")
for u in range(4):
    for qt in range(3): mfma(S+4*qt,ONES,O+16*qt+4*u,"0" if u==0 else None)
e("s_nop 7")
for qt in range(3):
    a=S+4*qt
    for i in range(4): e(f"v_mul_f32 v{a+i}, v{a+i}, v{KV+qt}")
    e(f"v_cvt_pk_bf16_f32 v{a}, v{a}, v{a+1}"); e(f"v_cvt_pk_bf16_f32 v{a+1}, v{a+2}, v{a+3}")
    e(f"buffer_store_dwordx2 {r(a,2)}, v{T+5}, s[{SWS}:{SWS+3}], s29 offen offset:{qt*1024}{SC}")
stamp()
if FUSE:
    e("s_waitcnt vmcnt(0)"); e("s_barrier"); flag(3,1)
    e("v_lshlrev_b32 v2, 4, v0"); e("v_lshlrev_b32 v6, 2, v0")
    e("s_and_b32 s18, s16, 1"); e("s_lshl_b32 s18, s18, 2"); e("s_and_b32 s19, s17, 3"); e("s_add_u32 s18, s18, s19")
    e("s_lshr_b32 s19, s16, 1"); e("s_lshl_b32 s19, s19, 3"); e("s_lshr_b32 s20, s17, 2"); e("s_add_u32 s19, s19, s20")
    e("s_mul_i32 s22, s18, 393216"); e("s_mul_i32 s23, s3, 49152"); e("s_add_u32 s22, s22, s23")
    e("s_lshl_b32 s23, s19, 18"); e("s_lshl_b32 s24, s3, 15"); e("s_add_u32 s23, s23, s24"); e(f"s_add_u32 s23, s23, {WOP}")
    PF=os.environ.get('PF','sc0 sc1')
    def poll(k):
        e("s_cmp_lg_u32 s3, 0"); e(f"s_cbranch_scc1 L_pd{k}")
        if k==0: e("s_or_b64 exec, s[40:41], s[78:79]")
        else: e("s_cmp_lg_u32 s39, 0"); e(f"s_cbranch_scc1 L_pd{k}"); e("s_mov_b64 exec, s[78:79]")
        e("s_mov_b32 s38, 0x4000")
        lab(f"L_pl{k}")
        e(f"buffer_load_dword v7, v6, s[72:75], 0 offen {PF}"); e("s_waitcnt vmcnt(0)")
        e("v_cmp_eq_u32 vcc, 0x03030303, v7"); e("v_and_b32 v7, 0x01010101, v7"); e("s_nop 4")
        e("s_and_b64 s[42:43], vcc, s[78:79]"); e("s_cmp_eq_u64 s[42:43], s[78:79]")
        if k==0:
            e("s_cselect_b32 s39, 1, 0"); e("v_cmp_eq_u32 vcc, 0x01010101, v7"); e("s_nop 4")
            e("s_and_b64 s[42:43], vcc, s[40:41]"); e("s_cmp_eq_u64 s[42:43], s[40:41]")
        e(f"s_cbranch_scc1 L_pd{k}")
        e(f"s_sleep {SLP}"); e("s_sub_u32 s38, s38, 1"); e("s_cmp_lg_u32 s38, 0"); e(f"s_cbranch_scc1 L_pl{k}")
        lab(f"L_pd{k}"); e("s_mov_b64 exec, -1"); e("s_barrier")
    e("s_lshr_b32 s24, s19, 4"); e("s_lshl_b32 s24, s24, 5"); e("s_lshl_b32 s27, s18, 3")
    e("s_mov_b32 s40, -1"); e("s_mov_b32 s41, 0"); e("s_lshl_b64 s[40:41], s[40:41], s24")
    e("s_mov_b32 s78, 255"); e("s_mov_b32 s79, 0"); e("s_lshl_b64 s[78:79], s[78:79], s27")
    poll(0)
    stamp()
    AC=8; WF=32; OF=160; NB=8
    for k in range(16):
        if k%2==0: e(f"s_add_u32 s25, s23, {k*2048}")
        for n in range(2): e(f"buffer_load_dwordx4 {r(WF+8*k+4*n)}, v2, s[{SWS}:{SWS+3}], s25 offen offset:{(k%2)*2048+n*1024}")
    poll(1)
    stamp()
    vm=VM()
    def ld(k):
        e(f"s_add_u32 s26, s22, {k*3072}")
        for qt in range(3): e(f"buffer_load_dwordx4 {r(OF+12*(k%NB)+4*qt)}, v2, s[{SWS}:{SWS+3}], s26 offen offset:{qt*1024}"); vm.issue(k)
    for k in range(NB): ld(k)
    e("s_lshl_b32 s27, s3, 10"); e("v_add_u32 v3, s27, v2"); e("s_lshl_b32 s27, s3, 13"); e("v_add_u32 v4, s27, v2")
    e("s_cmp_ge_u32 s3, 3"); e("s_cselect_b32 s28, 1, 0"); e("s_mul_i32 s29, s28, 3"); e("s_sub_u32 s29, s3, s29")
    e("s_mul_i32 s30, s18, 98304"); e("s_lshl_b32 s29, s29, 15"); e("s_add_u32 s30, s30, s29"); e("s_lshl_b32 s29, s19, 6"); e("s_add_u32 s30, s30, s29")
    e("s_lshl_b32 s29, s28, 5"); e("s_add_u32 s30, s30, s29")
    e("v_and_b32 v5, 15, v0"); e("v_lshlrev_b32 v5, 11, v5"); e("v_lshrrev_b32 v6, 4, v0"); e("v_lshl_add_u32 v5, v6, 3, v5")
    for k in range(16):
        vm.wait(k)
        for n in range(2):
            for qt in range(3): mfma(AC+12*n+4*qt,WF+8*k+4*n,OF+12*(k%NB)+4*qt,"0" if k==0 else None)
        if k+NB<16: ld(k+NB)
    stamp()
    e("s_nop 7")
    for t in range(6): e(f"ds_write_b128 v3, {r(AC+4*t)} offset:{t*8192}")
    e("s_waitcnt lgkmcnt(0)"); e("s_barrier")
    e("s_cmp_ge_u32 s3, 6"); e("s_cbranch_scc1 L_end0")
    for u in range(8): e(f"ds_read_b128 {r(WF+4*u)}, v4 offset:{u*1024}")
    e("s_waitcnt lgkmcnt(0)")
    for st in (4,2,1):
        for u in range(st):
            for h in range(2): e(f"v_pk_add_f32 {r(WF+4*u+2*h,2)}, {r(WF+4*u+2*h,2)}, {r(WF+4*(u+st)+2*h,2)}")
    e(f"v_cvt_pk_bf16_f32 v{WF}, v{WF}, v{WF+1}"); e(f"v_cvt_pk_bf16_f32 v{WF+1}, v{WF+2}, v{WF+3}")
    e(f"buffer_store_dwordx2 {r(WF,2)}, v5, s[68:71], s30 offen")
    stamp()
stamp_out(0,14,'s3')
lab("L_end0"); e("s_endpgm")
for qt in range(3):
    lab(f"L_rare{qt}")
    xmax(qt,T,T+1)
    e(f"v_max_f32 v{T}, 0, v{T}"); e(f"v_sub_f32 v{T+1}, 0, v{T}"); e(f"v_exp_f32 v{T+1}, v{T+1}")
    for i in range(4): e(f"v_sub_f32 v{MN+4*qt+i}, v{MN+4*qt+i}, v{T}")
    for i in range(8): e(f"v_sub_f32 v{S+8*qt+i}, v{S+8*qt+i}, v{T}")
    for i in range(4): e(f"v_mul_f32 v{L+4*qt+i}, v{L+4*qt+i}, v{T+1}")
    for dt in range(8):
        for i in range(4): e(f"v_mul_f32 v{O+12*dt+4*qt+i}, v{O+12*dt+4*qt+i}, v{T+1}")
    for j in range(1,7): e(f"s_cmp_eq_u32 s36, {j}"); e(f"s_cbranch_scc1 L_back{j}_{qt}")
    e(f"s_branch L_back7_{qt}")
K2S=len(o)
o.append('.globl gqa_oproj_kernel\n.p2align 8\n.type gqa_oproj_kernel,@function\ngqa_oproj_kernel:')
e("s_cmp_ge_u32 s2, 256"); e("s_cbranch_scc1 L_end1")
stamp()
e("s_load_dwordx2 s[12:13], s[0:1], 40"); e("s_load_dwordx2 s[14:15], s[0:1], 56")
e("v_lshrrev_b32 v1, 6, v0"); e("v_and_b32 v0, 63, v0"); e("v_readfirstlane_b32 s3, v1"); e("v_lshlrev_b32 v2, 4, v0")
e("s_and_b32 s16, s2, 7"); e("s_lshr_b32 s17, s2, 3")
e("s_and_b32 s18, s16, 1"); e("s_lshl_b32 s18, s18, 2"); e("s_and_b32 s19, s17, 3"); e("s_add_u32 s18, s18, s19")
e("s_lshr_b32 s19, s16, 1"); e("s_lshl_b32 s19, s19, 3"); e("s_lshr_b32 s20, s17, 2"); e("s_add_u32 s19, s19, s20")
if MAP:
    e("s_lshr_b32 s18, s16, 2"); e("s_lshl_b32 s18, s18, 2"); e("s_and_b32 s19, s17, 3"); e("s_add_u32 s18, s18, s19")
    e("s_and_b32 s19, s16, 3"); e("s_lshl_b32 s19, s19, 3"); e("s_add_u32 s19, s19, s20")
e("s_mul_i32 s22, s18, 393216"); e("s_mul_i32 s23, s3, 49152"); e("s_add_u32 s22, s22, s23")
e("s_lshl_b32 s23, s19, 18"); e("s_lshl_b32 s24, s3, 15"); e("s_add_u32 s23, s23, s24"); e(f"s_add_u32 s23, s23, {WOP}")
e("s_waitcnt lgkmcnt(0)")
for srd,b,sz in [(44,14,WOP+8388608),(48,12,786432)]:
    e(f"s_mov_b32 s{srd}, s{b}"); e(f"s_mov_b32 s{srd+1}, s{b+1}"); e(f"s_mov_b32 s{srd+2}, {sz}"); e(f"s_mov_b32 s{srd+3}, 0x00020000")
NB=11; BUF=32; AC=8
vm=VM()
def ld(k):
    b=BUF+20*(k%NB)
    e(f"s_add_u32 s25, s23, {k*2048}"); e(f"s_add_u32 s26, s22, {k*3072}")
    for n in range(2): e(f"buffer_load_dwordx4 {r(b+4*n)}, v2, s[44:47], s25 offen offset:{n*1024}"); vm.issue(k)
    for qt in range(3): e(f"buffer_load_dwordx4 {r(b+8+4*qt)}, v2, s[44:47], s26 offen offset:{qt*1024}"); vm.issue(k)
for k in range(NB): ld(k)
e("s_lshl_b32 s27, s3, 10"); e("v_add_u32 v3, s27, v2")
e("s_lshl_b32 s27, s3, 13"); e("v_add_u32 v4, s27, v2")
e("s_cmp_ge_u32 s3, 3"); e("s_cselect_b32 s28, 1, 0"); e("s_mul_i32 s29, s28, 3"); e("s_sub_u32 s29, s3, s29")
e("s_mul_i32 s30, s18, 98304"); e("s_lshl_b32 s29, s29, 15"); e("s_add_u32 s30, s30, s29"); e("s_lshl_b32 s29, s19, 6"); e("s_add_u32 s30, s30, s29")
e("s_lshl_b32 s29, s28, 5"); e("s_add_u32 s30, s30, s29")
e("v_and_b32 v5, 15, v0"); e("v_lshlrev_b32 v5, 11, v5"); e("v_lshrrev_b32 v6, 4, v0"); e("v_lshl_add_u32 v5, v6, 3, v5")
for k in range(16):
    vm.wait(k)
    b=BUF+20*(k%NB)
    for n in range(2):
        for qt in range(3): mfma(AC+12*n+4*qt,b+4*n,b+8+4*qt,"0" if k==0 else None)
    if k+NB<16: ld(k+NB)
stamp()
e("s_nop 7")
for t in range(6): e(f"ds_write_b128 v3, {r(AC+4*t)} offset:{t*8192}")
e("s_waitcnt lgkmcnt(0)"); e("s_barrier")
e("s_cmp_ge_u32 s3, 6"); e("s_cbranch_scc1 L_end1")
for u in range(8): e(f"ds_read_b128 {r(BUF+4*u)}, v4 offset:{u*1024}")
for st in (4,2,1):
    if st==4: e("s_waitcnt lgkmcnt(0)")
    for u in range(st):
        for h in range(2): e(f"v_pk_add_f32 {r(BUF+4*u+2*h,2)}, {r(BUF+4*u+2*h,2)}, {r(BUF+4*(u+st)+2*h,2)}")
e(f"v_cvt_pk_bf16_f32 v{BUF}, v{BUF}, v{BUF+1}"); e(f"v_cvt_pk_bf16_f32 v{BUF+1}, v{BUF+2}, v{BUF+3}")
e(f"buffer_store_dwordx2 {r(BUF,2)}, v5, s[48:51], s30 offen")
stamp()
stamp_out(1,14,'s3')
lab("L_end1"); e("s_endpgm")
if FUSE: del o[K2S:]
o.append('.section .rodata,"a"')
for k in ("gqa_attn_kernel","gqa_oproj_kernel")[:2-FUSE]:
    o.append(f'''.p2align 6
.amdhsa_kernel {k}
  .amdhsa_next_free_vgpr 256
  .amdhsa_next_free_sgpr 102
  .amdhsa_accum_offset 256
  .amdhsa_group_segment_fixed_size 0
  .amdhsa_kernarg_size 64
  .amdhsa_user_sgpr_count 2
  .amdhsa_user_sgpr_kernarg_segment_ptr 1
  .amdhsa_system_sgpr_workgroup_id_x 1
.end_amdhsa_kernel''')
print("\n".join(o))
```
